```python
import torch

def _softmax(x, axis=-1):
    return torch.softmax(x, dim=axis)
def _gelu(x):
    return torch.nn.functional.gelu(x, approximate="tanh")
def _silu(x):
    return torch.nn.functional.silu(x)
def _sigmoid(x):
    return torch.sigmoid(x)
def _layernorm(x, axis=-1, eps=1e-5):
    m = x.mean(dim=axis, keepdim=True)
    v = x.var(dim=axis, keepdim=True, unbiased=False)
    return (x - m) / torch.sqrt(v + eps)
def _scatter_add(tgt, idx, src, axis=0):
    return tgt.clone().index_add_(axis, idx, src)
def _segment_sum(src, seg, n):
    out = torch.zeros((n,) + src.shape[1:], dtype=src.dtype)
    return out.index_add_(0, seg, src)
def _pad(x, pw):
    flat = tuple(v for pair in reversed(pw) for v in pair)
    return torch.nn.functional.pad(x, flat)

kernel_name = 'gated_mix__ssm_conv_h3__mixer_channel_mlp__prompt'

def setup_inputs():

    _w = (lambda a: (lambda t: t.to(torch.bfloat16) if t.is_floating_point() else t)(torch.as_tensor(a)))
    def _A_setup():
        B, S, D = 1, 2048, 640
        ks = 4
        return {
            "q": _w((lambda *s: torch.randn(*s, dtype=torch.bfloat16) * 0.05)(B, S, D)),
            "k": _w((lambda *s: torch.randn(*s, dtype=torch.bfloat16) * 0.4)(B, S, D)),
            "v": _w((lambda *s: torch.randn(*s, dtype=torch.bfloat16) * 0.4)(B, S, D)),
            "shift_k": _w((lambda *s: torch.randn(*s, dtype=torch.bfloat16) * 0.4)(D, ks) * 0.5),
            "ssm_k": _w((lambda *s: torch.randn(*s, dtype=torch.bfloat16) * 1.6)(D, S) * (1.0 / S ** 0.5)),
            "ssm_D": _w((lambda *s: torch.randn(*s, dtype=torch.bfloat16) * 0.4)(D)),
        }
    _A_in = _A_setup()

    def _B_setup():
        B, S, D, F = 1, 2048, 640, 1536
        return {
            "x": _w((lambda *s: torch.randn(*s, dtype=torch.bfloat16) * 0.05)(B, S, D)),
            "w1": _w((lambda *s: torch.randn(*s, dtype=torch.bfloat16) * 0.8)(D, F) * (D ** -0.5)),
            "b1": _w((lambda *s: torch.randn(*s, dtype=torch.bfloat16) * 0.4)(F)),
            "w2": _w((lambda *s: torch.randn(*s, dtype=torch.bfloat16) * 0.05)(F, D) * (F ** -0.5)),
            "b2": _w((lambda *s: torch.randn(*s, dtype=torch.bfloat16) * 0.05)(D)),
        }
    _B_in = _B_setup()

    return {
        "A_q": _A_in["q"],
        "A_k": _A_in["k"],
        "A_v": _A_in["v"],
        "A_shift_k": _A_in["shift_k"],
        "A_ssm_k": _A_in["ssm_k"],
        "A_ssm_D": _A_in["ssm_D"],
        "B_x": _B_in["x"],
        "B_w1": _B_in["w1"],
        "B_b1": _B_in["b1"],
        "B_w2": _B_in["w2"],
        "B_b2": _B_in["b2"],
        "gate_w": _w((lambda *s: torch.randn(*s, dtype=torch.bfloat16) * 0.05)(640) * 16.0),
    }

def reference(A_q, A_k, A_v, A_shift_k, A_ssm_k, A_ssm_D, B_x, B_w1, B_b1, B_w2, B_b2, gate_w):
    def _A_ref(q, k, v, shift_k, ssm_k, ssm_D):
        B, S, D = q.shape
        ks = shift_k.shape[-1]
        k_pad = _pad(k, ((0, 0), (ks - 1, 0), (0, 0)))
        k_shift = torch.zeros_like(k)
        for t in range(ks):
            k_shift = k_shift + k_pad[:, t:t + S, :] * shift_k[:, ks - 1 - t][None, None, :]
        kv = k_shift * v
        L = 2 * S
        kv_pad = _pad(kv, ((0, 0), (0, S), (0, 0)))
        kf_pad = _pad(ssm_k, ((0, 0), (0, S)))
        kv_f = (lambda x, axes=(-2,-1): torch.fft.rfft2(x.float(), dim=axes))(kv_pad[:, None, :, :], axes=(1, 2))
        kf_f = (lambda x, axes=(-2,-1): torch.fft.rfft2(x.float(), dim=axes))(kf_pad[:, None, :], axes=(1, 2))
        kf_f = (lambda x, *d: x.permute(*d))(kf_f, 1, 2, 0)
        y_f = kv_f * kf_f[None, :, :, :]
        y = (lambda x, s, axes=(-2,-1): torch.fft.irfft2(x, s=s, dim=axes).to(torch.bfloat16))(y_f, (1, L), axes=(1, 2))[:, 0, :S, :]
        y = y + kv * ssm_D[None, None, :]
        return q * y

    def _B_ref(x, w1, b1, w2, b2):
        y = _layernorm(x, axis=-1)
        h = _gelu(torch.einsum("bsd,df->bsf", y, w1) + b1)
        return torch.einsum("bsf,fd->bsd", h, w2) + b2

    x = A_q
    g = _sigmoid((x * gate_w).sum(-1, keepdims=True))
    a = _A_ref(x, A_k, A_v, A_shift_k, A_ssm_k, A_ssm_D)
    b = _B_ref(x, B_w1, B_b1, B_w2, B_b2)
    return g * a + (1 - g) * b
```

```python
KN = "gated_mix__ssm_conv_h3__mixer_channel_mlp__prompt"

class Asm:
    def __init__(self):
        self.lines = []
        self.uid = 0
    def __call__(self, s=""):
        for l in s.split("\n"):
            self.lines.append("    " + l.strip() if l.strip() and not l.strip().endswith(":") else l.strip())
    def label(self, base="L"):
        self.uid += 1
        return f"{base}_{self.uid}"
    def text(self):
        return "\n".join(self.lines) + "\n"

HDR = """; Kernarg layout (120 bytes, ptrs only, base s[0:1]): 0 q, 8 k, 16 v, 24 shift_k, 32 ssm_k, 40 ssm_D, 48 B_x,
"""

def build_file(kernels):
    out = HDR
    if len(kernels) == 1 and kernels[0]["name"] == KN + "_kernel":
        k = kernels[0]
        out += f"; @launch grid=({k['grid'][0]},{k['grid'][1]},{k['grid'][2]}) block=({k['block']},1,1) lds={k['lds']}\n"
    else:
        for k in kernels:
            out += f"; @launch kernel={k['name']} grid=({k['grid'][0]},{k['grid'][1]},{k['grid'][2]}) block=({k['block']},1,1) lds={k['lds']}\n"
    out += '.amdgcn_target "amdgcn-amd-amdhsa--gfx950"\n.text\n'
    seen = set()
    for k in kernels:
        if k["name"] in seen:
            continue
        seen.add(k["name"])
        out += f".globl {k['name']}\n.p2align 8\n.type {k['name']},@function\n{k['name']}:\n"
        out += k["body"]
    out += '.section .rodata,"a"\n'
    seen = set()
    for k in kernels:
        if k["name"] in seen:
            continue
        seen.add(k["name"])
        v = k.get("vgpr", 128); a = k.get("agpr", 0)
        acc = (v + 3) // 4 * 4
        nfv = acc + a if a else v
        out += f".p2align 6\n.amdhsa_kernel {k['name']}\n"
        out += f"  .amdhsa_next_free_vgpr {nfv}\n  .amdhsa_next_free_sgpr {k.get('sgpr', 96)}\n  .amdhsa_accum_offset {acc}\n"
        out += "  .amdhsa_group_segment_fixed_size 0\n  .amdhsa_kernarg_size 120\n  .amdhsa_user_sgpr_count 2\n  .amdhsa_user_sgpr_kernarg_segment_ptr 1\n  .amdhsa_system_sgpr_workgroup_id_x 1\n"
        if k.get("wgy"):
            out += "  .amdhsa_system_sgpr_workgroup_id_y 1\n"
        if k.get("denorm"):
            out += "  .amdhsa_float_denorm_mode_32 3\n"
        out += ".end_amdhsa_kernel\n"
    return out

def srd(a, s, karg_off, nbytes):
    a(f"s_load_dwordx2 s[{s}:{s+1}], s[0:1], {karg_off}")
    a(f"s_mov_b32 s{s+2}, {nbytes}")
    a(f"s_mov_b32 s{s+3}, 0x00020000")
```

```python
import re
from asmlib import *

TRANS = ("v_exp_f32", "v_log_f32", "v_rcp_f32", "v_rsq_f32", "v_sqrt_f32", "v_sin_f32", "v_cos_f32")

def regs_of(tok):
    tok = tok.strip()
    neg = tok.lstrip("-").strip("|")
    m = re.fullmatch(r"([vas])(\d+)", neg)
    if m: return {(m.group(1), int(m.group(2)))}
    m = re.fullmatch(r"([vas])\[(\d+):(\d+)\]", neg)
    if m: return {(m.group(1), i) for i in range(int(m.group(2)), int(m.group(3)) + 1)}
    if neg in ("vcc", "vcc_lo", "vcc_hi"): return {("s", "vcc")}
    if neg in ("exec", "exec_lo", "exec_hi"): return {("s", "exec")}
    if neg == "m0": return {("s", "m0")}
    return set()

class Ins:
    def __init__(self, text):
        self.text = text
        t = text.split(";")[0].strip()
        self.label = t.endswith(":")
        self.op = t.split()[0] if t and not self.label else ""
        rest = t[len(self.op):].strip()
        ops = []
        depth = 0; cur = ""
        for ch in rest:
            if ch == "[": depth += 1
            if ch == "]": depth -= 1
            if ch == "," and depth == 0:
                ops.append(cur.strip()); cur = ""
            else:
                cur += ch
        if cur.strip(): ops.append(cur.strip())
        self.mods = ""
        if ops:
            parts = ops[-1].split()
            ops[-1] = parts[0]
            self.mods = " ".join(parts[1:])
        self.ops = ops
        op = self.op
        self.mfma = op.startswith("v_mfma")
        self.valu = op.startswith("v_") and not self.mfma
        self.salu = op.startswith("s_")
        self.vmem = op.startswith("buffer_") or op.startswith("global_")
        self.ds = op.startswith("ds_")
        self.trans = any(op.startswith(x) for x in TRANS)
        self.dot = op.startswith("v_dot")
        self.dpp = any(x in self.mods for x in ("row_ror", "row_shr", "row_shl", "quad_perm", "row_bcast", "row_mirror", "row_half_mirror", "row_newbcast"))
        self.perml = op.startswith("v_permlane")
        self.rfl = op.startswith("v_readfirstlane") or op.startswith("v_readlane")
        W = set(); R = set()
        o = [regs_of(x) for x in ops]
        if self.mfma:
            W = o[0]; self.A = o[1]; self.B = o[2]; self.C = o[3]; R = o[1] | o[2] | o[3]
            self.passes = 8 if "32x32x16" in op else 2 if "4x4x4" in op else 4
        elif self.valu:
            if op.startswith("v_nop"):
                pass
            elif op.startswith("v_cmpx"):
                W = {("s", "exec")} | o[0]; R = set().union(*o[1:])
            elif op.startswith("v_cmp"):
                W = o[0]; R = set().union(*o[1:])
            elif self.perml and "swap" in op:
                W = o[0] | o[1]; R = o[0] | o[1]
            elif "_co_" in op:
                W = o[0] | o[1]; R = set().union(*o[2:])
            else:
                W = o[0]; R = set().union(*o[1:]) if len(o) > 1 else set()
                if op.startswith("v_fmac") or op.startswith("v_dot2c") or op.startswith("v_writelane") or self.dpp or op.startswith("v_mac"):
                    R |= o[0]
                if op.startswith("v_cndmask") and len(ops) == 3:
                    R |= {("s", "vcc")}
        elif self.vmem:
            self.lds = " lds" in (" " + self.mods)
            self.store = "store" in op
            if self.lds:
                R = set().union(*o) | {("s", "m0")}
            elif self.store:
                R = set().union(*o); self.data = o[0] if op.startswith("buffer_") else o[1]
                self.wide = "x3" in op or "x4" in op
            elif "atomic" in op:
                R = set().union(*o); W = o[0] if "sc0" in self.mods else set()
            else:
                W = o[0]; R = set().union(*o[1:])
        elif self.ds:
            if "read" in op:
                W = o[0]; R = set().union(*o[1:])
            else:
                R = set().union(*o)
        elif self.salu:
            if op.startswith(("s_cmp", "s_cbranch", "s_branch", "s_waitcnt", "s_barrier", "s_nop", "s_endpgm", "s_sleep", "s_setprio", "s_bitcmp")):
                R = set().union(*o) if o else set()
            else:
                W = o[0]; R = set().union(*o[1:]) if len(o) > 1 else set()
                if "saveexec" in op: W = W | {("s", "exec")}
        self.W = W; self.R = R
    def states(self):
        if self.label or not self.op or self.op.startswith("."): return 0
        if self.op == "s_nop": return int(self.ops[0]) + 1
        return 1

def need(p, c):
    n = 0
    vW = {r for r in p.W if r[0] in "va"}
    sW = {r for r in p.W if r[0] == "s"}
    if p.mfma:
        big = p.passes == 8
        if c.mfma:
            if vW & (c.A | c.B): n = max(n, 12 if big else 8)
            if vW & c.C and p.passes == 2: n = max(n, 2)
            if vW & c.C and not (c.C == vW and c.passes == p.passes): n = max(n, 10 if big else 6)
            if vW & c.W and not (c.C == vW and c.passes == p.passes) and not (c.W == vW and c.passes == p.passes): n = max(n, 12 if big else 8)
        elif c.valu or c.vmem or c.ds:
            if vW & (c.R | c.W): n = max(n, 12 if big else 8)
            if c.valu and (p.C & c.W): n = max(n, 7 if big else 3)
    elif p.valu:
        if c.mfma:
            if vW & c.R: n = max(n, 3 if p.dot else 2)
            if ("s", "exec") in sW: n = max(n, 4)
        if c.vmem and (sW & c.R): n = max(n, 5)
        if c.valu:
            if (sW - {("s", "exec")}) & c.R: n = max(n, 4 if (c.op.startswith("v_readlane") or c.op.startswith("v_writelane")) else 2)
            if c.rfl and vW & c.R: n = max(n, 1)
            if p.trans and not c.trans and vW & c.R: n = max(n, 1)
            if p.trans and c.trans and vW & c.R: n = max(n, 1)
            if (c.dpp or c.perml) and vW & c.R: n = max(n, 2)
            if ("s", "exec") in sW and (c.dpp or c.perml or c.rfl): n = max(n, 5)
            if p.dot and vW & (c.R | c.W):
                same_c = c.op == p.op and (vW == c.W) and not (vW & set().union(*[regs_of(x) for x in c.ops[1:3]]))
                if not same_c: n = max(n, 3)
        if p.dot and (c.vmem or c.ds) and vW & c.R: n = max(n, 3)
        if c.salu and (sW & c.R): n = max(n, 1)
    elif p.salu:
        if ("s", "m0") in sW and c.vmem and getattr(c, "lds", False): n = max(n, 1)
    elif p.vmem:
        if getattr(p, "store", False) and p.wide and (p.data & c.W): n = max(n, 2 if c.valu else 1)
    return n

def fix_hazards(lines):
    out = []; hist = []
    pos = 0; added = 0
    for l in lines:
        s = l.split(";")[0].strip()
        if not s or s.startswith("."):
            out.append(l); continue
        I = Ins(l.strip())
        if I.label:
            out.append(l); continue
        req = 0
        for (p, pp) in hist:
            gap = pos - pp - 1
            if gap >= 12: continue
            n = need(p, I)
            if n - gap > req: req = n - gap
        if req > 0:
            out.append(f"    s_nop {req-1}")
            pos += req; added += req
        out.append(l)
        hist.append((I, pos + I.states() - 1))
        pos += I.states()
        if I.op in ("s_branch", "s_endpgm"):
            hist = []
        hist = hist[-14:]
    return out, added

class K(Asm):
    def __init__(self):
        super().__init__()
        self.vm = {}
        self.lg = {}
    def vmem(self, s, tag=None):
        self(s)
        for t in self.vm: self.vm[t] += 1
        if tag is not None: self.vm[tag] = 0
    def mark(self, tag):
        self.vm[tag] = 0
    def wait_vm(self, tag, lg=None):
        n = min(self.vm[tag], 63)
        if lg is None: self(f"s_waitcnt vmcnt({n})")
        else: self(f"s_waitcnt vmcnt({n}) lgkmcnt({lg})")
    def dsop(self, s, tag=None):
        self(s)
        for t in self.lg: self.lg[t] += 1
        if tag is not None: self.lg[tag] = 0
    def wait_lg(self, tag):
        n = min(self.lg[tag], 15)
        self(f"s_waitcnt lgkmcnt({n})")
    def snap(self):
        return dict(self.vm)
    def restore(self, s):
        self.vm = dict(s)
    def merge(self, snaps):
        keys = set(snaps[0])
        for s in snaps[1:]: keys &= set(s)
        self.vm = {k: min(s[k] for s in snaps) for k in keys}
    def text(self):
        out, added = fix_hazards(self.lines)
        self.nops_added = added
        return "\n".join(out) + "\n"
```

```python
import sys; sys.path.insert(0, "gen")
from kasm import *

WS_KVR = 0; WS_H = 0x300000; WS_W2F = 0x900000; WS_YT = 0xB00000; WS_ST = 0xE00000; WS_FL = 0xE10000; WS_SIZE = 0xE20000
SQ, SK, SV, SW1, SW2, SWS, SH, SO, SDBG, SSH, SGW, SB1, SB2, SD = 4, 8, 12, 16, 20, 24, 28, 32, 36, 40, 44, 48, 52, 56
def R(s): return f"s[{s}:{s+3}]"
WV, MT, NT, MT2, NT2, NONCE = "s60", "s61", "s62", "s63", "s64", "s65"
L_X = 0; L_W1 = 81920; L_SP = 143360; L_T = L_SP + 10240
L_HS = 0; L_KV = 49920; L_PX = 65536
L_PT = 0; L_Y = 98304
CV_TID, CV_SPA, CV_FXA, CV_FXV, CV_SPV, CV_H, CV_KV = 252, 253, 254, 255, 244, 208, 232
def v(a, n=1): return f"v{a}" if n == 1 else f"v[{a}:{a+n-1}]"
def ar(a, n=1): return f"a{a}" if n == 1 else f"a[{a}:{a+n-1}]"

class Gen:
    def __init__(self, name, fused):
        self.a = K(); self.name = name; self.fused = fused
        self.end = "L_end_" + name

    def prologue(self):
        a = self.a
        a(f"s_cmp_ge_u32 s2, 256\ns_cbranch_scc1 {self.end}")
        for s, off, nb in ((SK, 8, 2621440), (SV, 16, 2621440), (SSH, 24, 5120), (SQ, 0, 2621440), (SW1, 56, 1966080), (SW2, 72, 1966080),
                           (SWS, 112, WS_SIZE), (SGW, 88, 1280), (SB1, 64, 3072), (SH, 32, 2621440), (SD, 40, 1280),
                           (SO, 96, 2621440), (SDBG, 104, 256), (SB2, 80, 1280)):
            a(f"s_load_dwordx2 s[{s}:{s+1}], s[0:1], {off}")
        for s, off, nb in ((SK, 8, 2621440), (SV, 16, 2621440), (SSH, 24, 5120), (SQ, 0, 2621440), (SW1, 56, 1966080), (SW2, 72, 1966080),
                           (SWS, 112, WS_SIZE), (SGW, 88, 1280), (SB1, 64, 3072), (SH, 32, 2621440), (SD, 40, 1280),
                           (SO, 96, 2621440), (SDBG, 104, 256), (SB2, 80, 1280)):
            a(f"s_mov_b32 s{s+2}, {nb}\ns_mov_b32 s{s+3}, 0x00020000")
        a("v_lshrrev_b32 v1, 6, v0\nv_and_b32 v0, 63, v0")
        a(f"v_readfirstlane_b32 {WV}, v1")
        a("s_lshr_b32 s66, s2, 1\ns_and_b32 s66, s66, 3")
        a("s_and_b32 s67, s2, 1")
        a("s_lshr_b32 s68, s2, 3")
        a(f"s_lshr_b32 s69, s68, 3\ns_lshl2_add_u32 {MT}, s66, s69")
        a(f"s_and_b32 s69, s68, 7\ns_lshl3_add_u32 {NT}, s67, s69")
        a(f"s_lshr_b32 s69, s68, 2\ns_lshl3_add_u32 {MT2}, s66, s69")
        a(f"s_and_b32 s69, s68, 3\ns_lshl2_add_u32 {NT2}, s67, s69")

    def epilogue(self):
        self.a(f"{self.end}:\ns_endpgm")

    def p_addr(self):
        a = self.a
        a("v_and_b32 v1, 7, v0\nv_lshrrev_b32 v2, 3, v0")
        a(f"s_mul_i32 s66, {MT2}, 81920\ns_mul_i32 s67, {NT2}, 160\ns_add_u32 s66, s66, s67\ns_lshl_b32 s67, {WV}, 5\ns_add_u32 s66, s66, s67")
        a("v_mul_u32_u24 v36, 10240, v1\nv_lshl_add_u32 v36, v2, 2, v36\nv_add_u32 v36, s66, v36")
        a("v_subrev_u32 v37, 3840, v36\nv_cmp_le_i32 vcc, 0, v37\nv_cndmask_b32 v37, 0x80000000, v37, vcc".replace("0x80000000", "v3"))
        a.lines.insert(-3, "    v_mov_b32 v3, 0x80000000")
        a(f"s_mul_i32 s66, {NT2}, 640\ns_lshl_b32 s67, {WV}, 7\ns_add_u32 s66, s66, s67")
        a("v_lshlrev_b32 v38, 4, v2\nv_add_u32 v38, s66, v38")
        a(f"s_mul_i32 s66, {NT2}, {80*4096}\ns_lshl_b32 s67, {WV}, 16\ns_add_u32 s66, s66, s67\ns_lshl_b32 s67, {MT2}, 7\ns_sub_u32 s66, s66, s67\ns_add_u32 s66, s66, {WS_KVR+4080}")
        a("v_lshlrev_b32 v39, 13, v2\nv_lshlrev_b32 v1, 4, v1\nv_sub_u32 v39, v39, v1\nv_add_u32 v39, s66, v39")
        a("s_movk_i32 s70, 5120\ns_movk_i32 s71, 4096\ns_mov_b32 s72, 262144\ns_mov_b32 s73, 266240")

    def p_item_loads(self, Rb, second, tag):
        a = self.a
        o = 128 if second else 0
        a.vmem(f"buffer_load_dwordx4 {v(Rb+20,4)}, v38, {R(SSH)}, 0 offen offset:{4*o}")
        for i in range(3):
            a.vmem(f"buffer_load_dword v{Rb+i}, v37, {R(SK)}, 0 offen offset:{i*1280+o}")
        for i in range(8):
            a.vmem(f"buffer_load_dword v{Rb+3+i}, v36, {R(SK)}, {'s70' if i >= 4 else '0'} offen offset:{(i&3)*1280+o}")
        a.mark(tag + "k")
        for i in range(8):
            a.vmem(f"buffer_load_dword v{Rb+11+i}, v36, {R(SV)}, {'s70' if i >= 4 else '0'} offen offset:{(i&3)*1280+o}")
        a.mark(tag)

    def p_item_compute(self, Rb, Ob, second, tag):
        a = self.a
        KP, SP, AC = 96, 118, 126
        a.wait_vm(tag + "k")
        for j in range(4):
            for c in range(2):
                src = Rb + 20 + 2 * c + (j >> 1)
                if j & 1: a(f"v_and_b32 v{SP+2*j+c}, 0xffff0000, v{src}")
                else: a(f"v_lshlrev_b32 v{SP+2*j+c}, 16, v{src}")
        for i in range(11):
            a(f"v_lshlrev_b32 v{KP+2*i}, 16, v{Rb+i}\nv_and_b32 v{KP+2*i+1}, 0xffff0000, v{Rb+i}")
        for j in (3, 2, 1, 0):
            for i in range(8):
                kp = KP + 2 * (i + 3 - j)
                if j == 3: a(f"v_pk_mul_f32 {v(AC+2*i,2)}, {v(kp,2)}, {v(SP+2*j,2)}")
                else: a(f"v_pk_fma_f32 {v(AC+2*i,2)}, {v(kp,2)}, {v(SP+2*j,2)}, {v(AC+2*i,2)}")
        a.wait_vm(tag)
        for i in range(8):
            a(f"v_lshlrev_b32 v{KP+2*i}, 16, v{Rb+11+i}\nv_and_b32 v{KP+2*i+1}, 0xffff0000, v{Rb+11+i}")
        for i in range(8):
            a(f"v_pk_mul_f32 {v(AC+2*i,2)}, {v(AC+2*i,2)}, {v(KP+2*i,2)}")
        for c in range(2):
            for m in range(4):
                a(f"v_cvt_pk_bf16_f32 v{Ob+4*c+m}, v{AC+2*(7-2*m)+c}, v{AC+2*(6-2*m)+c}")
            so = (("0", "s71"), ("s72", "s73"))[second][c]
            a.vmem(f"buffer_store_dwordx4 {v(Ob+4*c,4)}, v39, {R(SWS)}, {so} offen sc1")

    def p_stats_loads(self):
        a = self.a
        a(f"s_lshl_b32 s66, s2, 3\ns_lshl2_add_u32 s66, {WV}, s66\ns_sub_u32 s66, s66, 8")
        a("v_lshrrev_b32 v40, 4, v0\nv_add_u32 v40, s66, v40")
        a("v_and_b32 v41, 15, v0\nv_lshlrev_b32 v41, 4, v41")
        a("v_mul_u32_u24 v42, 1280, v40\nv_add_u32 v42, v42, v41")
        for n in range(5):
            a.vmem(f"buffer_load_dwordx4 {v(208+4*n,4)}, v42, {R(SQ)}, 0 offen offset:{256*n}")
        for n in range(5):
            a.vmem(f"buffer_load_dwordx4 {v(228+4*n,4)}, v41, {R(SGW)}, 0 offen offset:{256*n}")
        a.mark("stat")

    def p_stats_compute(self):
        a = self.a
        a("v_mov_b32 v43, 0x3f803f80\nv_mov_b32 v44, 0\nv_mov_b32 v45, 0\nv_mov_b32 v46, 0")
        a.wait_vm("stat")
        for i in range(20):
            a(f"v_dot2c_f32_bf16 v44, v{208+i}, v43")
            a(f"v_dot2c_f32_bf16 v45, v{208+i}, v{208+i}")
            a(f"v_dot2c_f32_bf16 v46, v{208+i}, v{228+i}")
        for sh in (8, 4, 2, 1):
            for r in (44, 45, 46):
                a(f"v_add_f32_dpp v{r}, v{r}, v{r} row_ror:{sh} row_mask:0xf bank_mask:0xf")
        inv = "0x3acccccd"
        a(f"v_mul_f32 v44, {inv}, v44\nv_mul_f32 v45, {inv}, v45")
        a("v_fma_f32 v45, -v44, v44, v45\nv_max_f32 v45, 0, v45")
        a("v_cvt_pk_bf16_f32 v45, v45, v46")
        a("v_and_b32 v46, 0xffff0000, v45\nv_lshlrev_b32 v45, 16, v45")
        a("v_add_f32 v45, 0x3727c5ac, v45")
        a("v_mul_f32 v46, 0xbfb8aa3b, v46")
        a("v_cvt_pk_bf16_f32 v45, v45, v45\nv_exp_f32 v46, v46")
        a("v_lshlrev_b32 v45, 16, v45\nv_add_f32 v46, 1.0, v46")
        a("v_sqrt_f32 v45, v45\nv_rcp_f32 v46, v46")
        a("v_cvt_pk_bf16_f32 v44, -v44, v45")
        a("v_cvt_pk_bf16_f32 v46, v46, v46\nv_lshlrev_b32 v46, 16, v46")
        a("v_sub_f32 v45, 1.0, v46\nv_cvt_pk_bf16_f32 v45, v46, v45")
        a(f"v_lshlrev_b32 v40, 3, v40\nv_add_u32 v40, {WS_ST}, v40")
        a("v_cmp_eq_u32 vcc, 0, v41\ns_and_saveexec_b64 s[66:67], vcc")
        a.vmem(f"buffer_store_dwordx2 v[44:45], v40, {R(SWS)}, 0 offen sc1")
        a("s_mov_b64 exec, s[66:67]")

    def p_w2f_loads(self):
        a = self.a
        a("s_lshr_b32 s66, s2, 2\ns_mul_i32 s66, s66, 40960\ns_and_b32 s67, s2, 3\ns_mul_i32 s67, s67, 320\ns_add_u32 s66, s66, s67")
        for n in range(5):
            a(f"v_add_u32 v1, {64*n}, v0\nv_mul_u32_u24 v2, 3277, v1\nv_lshrrev_b32 v2, 16, v2")
            a(f"v_mul_u32_u24 v2, 960, v2\nv_lshl_add_u32 v2, v1, 4, v2\nv_add_u32 v{40+n}, s66, v2")
        a("s_movk_i32 s74, 20480")
        for n in range(10):
            a(f"s_mov_b32 m0, {L_SP + 1024*n}")
            a.vmem(f"buffer_load_dwordx4 v{40+n%5}, {R(SW2)}, {'s74' if n >= 5 else '0'} offen lds")
        a.mark("w2f")

    def p_w2f_compute(self):
        a = self.a
        a("v_lshrrev_b32 v1, 5, v0\nv_bfe_u32 v2, v0, 2, 3\nv_lshl_add_u32 v1, v1, 4, v2")
        a("v_mul_u32_u24 v1, 320, v1\nv_and_b32 v2, 3, v0\nv_mul_u32_u24 v2, 40, v2")
        a(f"v_add3_u32 v1, v1, v2, 0\nv_add_u32 v1, {L_SP}, v1")
        a(f"s_and_b32 s66, s2, 3\ns_mul_i32 s66, s66, {2*48*5120}\ns_lshr_b32 s67, s2, 2\ns_mul_i32 s67, s67, 5120\ns_add_u32 s66, s66, s67\ns_add_u32 s66, s66, {WS_W2F}")
        a("v_lshlrev_b32 v2, 4, v0\nv_add_u32 v2, s66, v2")
        a(f"s_movk_i32 s74, 4096\ns_mov_b32 s75, {48*5120}\ns_mov_b32 s76, {48*5120+4096}")
        a.wait_vm("w2f")
        for half in range(2):
            for j in range(5):
                d = 208 + (half * 5 + j) * 4
                a.dsop(f"ds_read_b64_tr_b16 {v(d,2)}, v1 offset:{160*half+8*j}")
                a.dsop(f"ds_read_b64_tr_b16 {v(d+2,2)}, v1 offset:{160*half+8*j+2560}", tag=f"w2f{half}{j}")
            for j in range(5):
                d = 208 + (half * 5 + j) * 4
                a.wait_lg(f"w2f{half}{j}")
                so = (("0", "s74"), ("s75", "s76"))[half][j >> 2]
                a.vmem(f"buffer_store_dwordx4 {v(d,4)}, v2, {R(SWS)}, {so} offen offset:{(j&3)*1024} sc1")

    def phase_p(self, pre=None, post=None):
        a = self.a
        pre = pre or (lambda: None); post = post or (lambda: None)
        self.p_addr()
        L1, L23, LJ = a.label("Lp1"), a.label("Lp23"), a.label("Lpj")
        a("s_waitcnt lgkmcnt(0)")
        a(f"s_cmp_eq_u32 {WV}, 1\ns_cbranch_scc1 {L1}\ns_cmp_gt_u32 {WV}, 1\ns_cbranch_scc1 {L23}")
        s0 = a.snap(); outs = []
        self.p_item_loads(144, False, "pa"); self.p_item_loads(168, True, "pb")
        pre()
        self.p_item_compute(144, 192, False, "pa"); self.p_item_compute(168, 200, True, "pb")
        a.mark("pst")
        post()
        a(f"s_nop 1\ns_branch {LJ}")
        outs.append(a.snap()); a.restore(s0)
        a(f"{L1}:")
        Lno, Lno2 = a.label("Lpno"), a.label("Lpno")
        self.p_item_loads(144, False, "pa")
        a(f"s_cmp_ge_u32 s2, 192\ns_cbranch_scc1 {Lno}")
        s1 = a.snap()
        self.p_w2f_loads()
        a("s_nop 1")
        a(f"{Lno}:")
        w = a.vm["w2f"]; a.merge([a.snap(), s1]); a.vm["w2f"] = w
        pre()
        self.p_item_compute(144, 192, False, "pa")
        a(f"s_cmp_ge_u32 s2, 192\ns_cbranch_scc1 {Lno2}")
        s1 = a.snap()
        self.p_w2f_compute()
        a(f"{Lno2}:")
        a.merge([a.snap(), s1])
        a.mark("pst")
        post()
        a(f"s_nop 1\ns_branch {LJ}")
        outs.append(a.snap()); a.restore(s0)
        a(f"{L23}:")
        self.p_item_loads(144, False, "pa")
        self.p_stats_loads()
        pre()
        self.p_item_compute(144, 192, False, "pa")
        self.p_stats_compute()
        a.mark("pst")
        post()
        outs.append(a.snap())
        a(f"{LJ}:")
        a.merge(outs)

    def g1_addr(self):
        a = self.a
        a(f"s_lshl_b32 s66, {MT}, 2\ns_add_u32 s66, s66, {WV}\ns_mul_i32 s66, s66, {32*1280}")
        a("v_lshrrev_b32 v1, 3, v0\nv_mul_u32_u24 v1, 1280, v1\nv_add_u32 v1, s66, v1")
        a("v_and_b32 v2, 7, v0\nv_lshrrev_b32 v3, 4, v0\nv_xor_b32 v2, v2, v3")
        a("v_lshl_add_u32 v4, v2, 4, v1")
        a(f"v_xor_b32 v2, 4, v2\nv_lshl_add_u32 v5, v2, 4, v1\nv_add_u32 v5, {10240-1024}, v5")
        a(f"v_add_u32 v6, {20480-2048}, v4\nv_add_u32 v7, {20480-2048}, v5")
        a(f"s_mul_i32 s66, {WV}, 192\ns_mul_i32 s67, {NT}, 192")
        for i in range(3):
            a(f"v_add_u32 v1, s66, v0")
            if i: a(f"v_add_u32 v1, {64*i}, v1")
            a("v_mul_u32_u24 v2, 5462, v1\nv_lshrrev_b32 v2, 16, v2")
            a(f"v_mul_u32_u24 v2, {3072-192}, v2\nv_lshl_add_u32 v2, v1, 4, v2\nv_add_u32 v{8+i}, s67, v2")
            if i: a(f"v_subrev_u32 v{8+i}, {1024*i}, v{8+i}")
        a(f"s_mul_i32 s77, {WV}, 20480\ns_mul_i32 s78, {WV}, 3072\ns_add_u32 s78, s78, {L_W1}")

    def g1_addr2(self):
        a = self.a
        a("v_and_b32 v1, 31, v0\nv_lshrrev_b32 v2, 5, v0\nv_bfe_u32 v3, v0, 1, 3\nv_xor_b32 v3, v3, v2")
        a(f"s_lshl_b32 s66, {WV}, 1\nv_xor_b32 v3, s66, v3\nv_lshlrev_b32 v3, 4, v3")
        a("v_lshlrev_b32 v1, 7, v1\nv_add_u32 v1, s77, v1")
        for s in range(4):
            a(f"v_xor_b32 v{12+s}, {32*s}, v3\nv_add_u32 v{12+s}, v{12+s}, v1")
        a("v_bfe_u32 v1, v0, 2, 2\nv_lshl_add_u32 v1, v2, 3, v1\nv_mul_u32_u24 v1, 192, v1")
        a("v_bfe_u32 v3, v0, 4, 1\nv_lshl_add_u32 v1, v3, 5, v1\nv_and_b32 v3, 3, v0\nv_lshl_add_u32 v1, v3, 3, v1")
        for s in range(4):
            a(f"s_xor_b32 s66, {WV}, {s}\ns_mul_i32 s66, s66, 3072\ns_add_u32 s66, s66, {L_W1}\nv_add_u32 v{16+s}, s66, v1")
        a("v_and_b32 v1, 15, v0\nv_bfe_u32 v2, v0, 4, 1\nv_sub_u32 v1, v1, v2\nv_mov_b32 v3, 0x3f803f80")
        for t in range(3):
            a(f"v_cmp_eq_u32 vcc, {4*t}, v1\nv_cndmask_b32 v{20+4*t}, 0, v3, vcc")
            for r in range(1, 4): a(f"v_mov_b32 v{20+4*t+r}, v{20+4*t}")

    def g1_dma_list(self, n):
        slot = n % 5
        L = [(f"s_add_u32 m0, s77, {L_X + slot*4096}", 0), (f"s_movk_i32 s79, {n*128}", 0)]
        for i in range(4): L.append((f"buffer_load_dwordx4 v{4+i}, {R(SQ)}, s79 offen offset:{1024*i} lds", 1))
        L += [(f"s_add_u32 m0, s78, {slot*12288}", 0), (f"s_mov_b32 s80, {n*196608}", 0)]
        for i in range(3): L.append((f"buffer_load_dwordx4 v{8+i}, {R(SW1)}, s80 offen offset:{1024*i} lds", 1))
        return L
    def g1_dma(self, n):
        for t, isv in self.g1_dma_list(n):
            if isv: self.a.vmem(t)
            else: self.a(t)
        self.a.mark(f"st{n}")

    def g1_b1(self):
        a = self.a
        a(f"s_mul_i32 s66, {WV}, 16\ns_mul_i32 s67, {NT}, 96\nv_add_u32 v47, s66, v0")
        a("v_add_u32 v1, s67, v47\nv_lshlrev_b32 v1, 1, v1")
        a.vmem(f"buffer_load_ushort v248, v1, {R(SB1)}, 0 offen", tag="b1")
    def g1_b1_store(self):
        a = self.a
        a("v_mov_b32 v249, 0\nv_mov_b32 v250, 0\nv_mov_b32 v251, 0\nv_lshlrev_b32 v47, 5, v47")
        a.wait_vm("b1")
        a(f"v_add_u32 v47, {L_T}, v47")
        a.dsop("ds_write_b128 v47, v[248:251] offset:16")

    def g1_reads(self, q):
        n, s = q >> 2, q & 3
        fb = 96 + 16 * (q % 3); slot = n % 5
        L = [f"ds_read_b128 {v(fb+12,4)}, v{12+s} offset:{slot*4096}"]
        for t in range(3):
            for h in range(2):
                L.append(f"ds_read_b64_tr_b16 {v(fb+4*t+2*h,2)}, v{16+s} offset:{slot*12288+64*t+768*h}")
        return L

    def g1_loop(self, hook=None):
        a = self.a
        hook = hook or (lambda q, pos: None)
        a.wait_vm("st0", lg=0); a("s_barrier")
        for q in (0, 1):
            L = self.g1_reads(q)
            for i, t in enumerate(L): a.dsop(t, tag=f"rd{q}" if i == len(L) - 1 else None)
        dq = []
        for q in range(40):
            n, s = q >> 2, q & 3
            fb = 96 + 16 * (q % 3)
            rd = self.g1_reads(q + 2) if q + 2 < 40 else []
            bar = (s == 2 and n + 1 < 10)
            def mf(t):
                c = v(48 + 16 * t, 16) if q else "0"
                a(f"v_mfma_f32_32x32x16_bf16 {v(48+16*t,16)}, {v(fb+4*t,4)}, {v(fb+12,4)}, {c}")
            def cs(t):
                c = "v[32:35]" if (q or t) else "0"
                a(f"v_mfma_f32_16x16x32_bf16 v[32:35], {v(20+4*t,4)}, {v(fb+4*t,4)}, {c}")
            def rds(k):
                for _ in range(k):
                    if rd:
                        t = rd.pop(0); a.dsop(t, tag=f"rd{q+2}" if not rd else None)
            def dmas(k):
                for _ in range(k):
                    while dq and not dq[0][1]: a(dq.pop(0)[0])
                    if dq:
                        t, isv, tag = dq.pop(0); a.vmem(t, tag=tag)
            a.wait_lg(f"rd{q}")
            mf(0)
            if bar:
                mf(1)
                assert not dq
                a.wait_vm(f"st{n+1}", lg=0); a("s_barrier")
                if 1 <= n + 1 and n + 5 <= 9:
                    L = self.g1_dma_list(n + 5)
                    dq = [(t, isv, None) for t, isv in L]; dq[-1] = (dq[-1][0], 1, f"st{n+5}")
                hook(q, "bar")
                rds(3); mf(2); rds(4); dmas(1)
            else:
                rds(3); dmas(1)
                if s == 0: cs(0)
                mf(1); rds(2); dmas(1)
                if s == 0: cs(1)
                hook(q, "mid")
                mf(2); rds(2)
                if s == 0: cs(2)
                if s == 1: dmas(2)
            if q == 37:
                self.g1_cs_write()
        assert not dq

    def g1_cs_write(self):
        a = self.a
        a("v_lshrrev_b32 v1, 4, v0\nv_and_b32 v2, 15, v0\nv_lshl_add_u32 v1, v1, 5, v2\nv_lshlrev_b32 v1, 5, v1")
        a(f"s_lshl2_add_u32 s66, {WV}, {L_T}\nv_add_u32 v1, s66, v1")
        a("v_cvt_pk_bf16_f32 v2, v32, v33\nv_lshlrev_b32 v34, 16, v2\nv_and_b32 v35, 0xffff0000, v2")
        a("v_sub_f32 v32, v32, v34\nv_sub_f32 v33, v33, v35")
        a("v_cvt_pk_bf16_f32 v34, v34, v32\nv_cvt_pk_bf16_f32 v35, v35, v33")
        a.dsop("ds_write_b32 v1, v34")
        a.dsop("ds_write_b32 v1, v35 offset:512")

    def g1_stats_load(self):
        a = self.a
        a(f"s_lshl_b32 s66, {MT}, 2\ns_add_u32 s66, s66, {WV}\ns_lshl_b32 s66, s66, 8\ns_add_u32 s66, s66, {WS_ST}")
        a("v_and_b32 v1, 31, v0\nv_lshlrev_b32 v1, 3, v1\nv_add_u32 v1, s66, v1")
        a.vmem(f"buffer_load_dword v36, v1, {R(SWS)}, 0 offen sc1", tag="stats")

    def g1_finish(self):
        a = self.a
        a("v_and_b32 v1, 31, v0\nv_lshrrev_b32 v2, 5, v0\nv_lshlrev_b32 v1, 5, v1\nv_lshl_add_u32 v1, v2, 4, v1")
        a(f"v_add_u32 v1, {L_T}, v1")
        a("v_mov_b32 v3, 0x02020202\nv_mul_lo_u32 v3, v3, v2\nv_add_u32 v3, 0x01000100, v3")
        a("s_waitcnt lgkmcnt(0)\ns_barrier")
        for t in range(3):
            a.dsop(f"ds_read_b128 {v(144+4*t,4)}, v1 offset:{1024*t}", tag=f"T{t}")
        a.wait_vm("stats")
        a("v_perm_b32 v40, v36, v36, v3\nv_and_b32 v38, 0xffff0000, v36")
        a("v_mov_b32 v41, v40\nv_mov_b32 v42, v40\nv_mov_b32 v43, v40\nv_rcp_f32 v36, v38\nv_mov_b32 v39, v38")
        for t in range(3):
            a.wait_lg(f"T{t}")
            a(f"v_mfma_f32_32x32x16_bf16 {v(48+16*t,16)}, {v(144+4*t,4)}, v[40:43], {v(48+16*t,16)}")
        import struct, math
        A = -2 * math.sqrt(2 / math.pi) * math.log2(math.e); B = A * 0.044715
        fh = lambda x: "0x%08x" % struct.unpack("<I", struct.pack("<f", x))[0]
        a(f"v_mul_f32 v37, v36, v36\nv_mul_f32 v37, v37, v36\nv_mul_f32 v36, {fh(A)}, v36\nv_mul_f32 v37, {fh(B)}, v37")
        a(f"s_lshl_b32 s66, {MT}, 2\ns_add_u32 s66, s66, {WV}\ns_mul_i32 s66, s66, {2*48*1024}\ns_mul_i32 s67, {NT}, 3072\ns_add_u32 s66, s66, s67\ns_add_u32 s66, s66, {WS_H}")
        a(f"v_bfe_u32 v1, v0, 4, 1\nv_mul_u32_u24 v1, {48*1024}, v1\nv_and_b32 v2, 15, v0\nv_lshl_add_u32 v1, v2, 4, v1")
        a("v_lshrrev_b32 v2, 5, v0\nv_lshl_add_u32 v1, v2, 8, v1\nv_add_u32 v44, s66, v1")
        for t in range(3):
            for p in range(2):
                P = 48 + 16 * t + 8 * p
                T = 96 + 16 * ((2 * t + p) & 1); O = T + 8
                for i in range(4): a(f"v_pk_mul_f32 {v(T+2*i,2)}, {v(P+2*i,2)}, {v(P+2*i,2)}")
                for i in range(4): a(f"v_pk_fma_f32 {v(T+2*i,2)}, {v(T+2*i,2)}, v[36:37], v[36:37] op_sel:[0,1,0] op_sel_hi:[1,1,0]")
                for i in range(4): a(f"v_pk_mul_f32 {v(T+2*i,2)}, {v(T+2*i,2)}, {v(P+2*i,2)}")
                for i in range(8): a(f"v_exp_f32 v{T+i}, v{T+i}")
                for i in range(4): a(f"v_pk_fma_f32 {v(T+2*i,2)}, {v(T+2*i,2)}, v[38:39], v[38:39]")
                for i in range(8): a(f"v_rcp_f32 v{T+i}, v{T+i}")
                for i in range(4): a(f"v_pk_mul_f32 {v(T+2*i,2)}, {v(T+2*i,2)}, {v(P+2*i,2)}")
                for i in range(4): a(f"v_cvt_pk_bf16_f32 v{O+i}, v{T+2*i}, v{T+2*i+1}")
                a.vmem(f"buffer_store_dwordx4 {v(O,4)}, v44, {R(SWS)}, 0 offen offset:{1024*t+512*p} sc1")
        a.mark("hst")


    def cv_addr(self):
        a = self.a
        a("s_lshr_b32 s66, s2, 1\ns_mul_i32 s66, s66, 5\ns_and_b32 s67, s2, 1\ns_mul_i32 s67, s67, 3")
        a("s_add_u32 s81, s66, s67\ns_lshl_b32 s81, s81, 12\ns_add_u32 s82, s81, 4096\ns_add_u32 s83, s66, 2\ns_lshl_b32 s83, s83, 12")
        a(f"s_lshl_b32 s66, {WV}, 10\nv_lshlrev_b32 v{CV_TID}, 4, v0\nv_add_u32 v{CV_TID}, s66, v{CV_TID}")
    def cv_h_loads(self):
        a = self.a
        for z in range(3):
            a.vmem(f"buffer_load_dwordx4 {v(CV_H+8*z,4)}, v{CV_TID}, {R(SH)}, s{81+z} offen")
            a.vmem(f"buffer_load_dwordx2 {v(CV_H+8*z+4,2)}, v{CV_TID}, {R(SH)}, s{81+z} offen offset:16")
        a(f"v_bfe_u32 v1, v0, 3, 2\nv_min_u32 v1, 2, v1\nv_mov_b32 v2, s81\nv_mov_b32 v3, s82")
        a("v_cmp_eq_u32 vcc, 1, v1\nv_cndmask_b32 v2, v2, v3, vcc\nv_mov_b32 v3, s83\nv_cmp_eq_u32 vcc, 2, v1\nv_cndmask_b32 v2, v2, v3, vcc")
        a("v_lshrrev_b32 v3, 11, v2")
        a.vmem(f"buffer_load_dwordx2 {v(CV_SPV+2,2)}, v2, {R(SH)}, 0 offen")
        a.vmem(f"buffer_load_ushort v{CV_SPV}, v3, {R(SD)}, 0 offen", tag="cvh")
    def cv_kv_loads(self):
        a = self.a
        for z in range(3):
            a.vmem(f"buffer_load_dwordx4 {v(CV_KV+4*z,4)}, v{CV_TID}, {R(SWS)}, s{81+z} offen sc1")
        a.mark("cvkv")
    def cv_special(self):
        a = self.a
        S = CV_SPV
        L0, LJ = a.label("Lsp"), a.label("Lspj")
        a.wait_vm("cvh")
        a(f"s_cmp_eq_u32 {WV}, 0\ns_cbranch_scc1 {L0}")
        a(f"s_mul_i32 s66, {WV}, 4608\ns_add_u32 s66, s66, {L_KV - 4608 + 4096}")
        a(f"v_and_b32 v1, 31, v0\nv_lshlrev_b32 v1, 4, v1\nv_add_u32 v{CV_SPA}, s66, v1\nv_mov_b32 v{CV_FXA}, v{CV_SPA}")
        a(f"v_mov_b32 v{S+2}, 0\nv_mov_b32 v{S+3}, 0\nv_mov_b32 v{CV_FXV}, 0\ns_nop 1\ns_branch {LJ}")
        a(f"{L0}:")
        a(f"v_lshlrev_b32 v{S}, 16, v{S}\nv_lshlrev_b32 v1, 16, v{S+2}\nv_add_f32 v1, v1, v{S}\nv_cvt_pk_bf16_f32 v{CV_FXV}, v1, v1")
        a(f"v_mov_b32 v1, 0xffff\nv_bfi_b32 v{S+2}, v1, v{CV_FXV}, v{S+2}")
        a(f"v_lshlrev_b64 {v(S+2,2)}, 16, {v(S+2,2)}")
        a(f"v_bfe_u32 v1, v0, 1, 2\nv_lshlrev_b32 v2, 4, v1\nv_sub_u32 v2, 48, v2\nv_lshlrev_b64 {v(S+2,2)}, v2, {v(S+2,2)}")
        a(f"v_and_b32 v2, 1, v0\nv_cmp_eq_u32 vcc, 1, v2\nv_cndmask_b32 v{S+2}, 0, v{S+2}, vcc\nv_cndmask_b32 v{S+3}, 0, v{S+3}, vcc")
        a(f"v_bfe_u32 v3, v0, 3, 2\nv_min_u32 v3, 2, v3\nv_mul_u32_u24 v3, {4*4160}, v3\nv_add_u32 v{CV_FXA}, {L_HS+32}, v3")
        a(f"v_mul_u32_u24 v1, 4160, v1\nv_lshl_add_u32 v1, v2, 4, v1\nv_add_u32 v1, v1, v3\nv_add_u32 v{CV_SPA}, {L_HS}, v1")
        a(f"{LJ}:")
        a(f"v_mov_b32 v{S}, 0\nv_mov_b32 v{S+1}, 0")
    def cv_h_write(self, T=96):
        a = self.a
        for z in range(3):
            d = CV_H + 8 * z; t = T + 12 * z
            a.dsop(f"ds_write_b128 v{CV_TID}, {v(d,4)} offset:{L_HS+32+(4*z)*4160}")
            for i in range(4): a(f"v_alignbit_b32 v{t+i}, v{d+i+1}, v{d+i}, 16")
            a.dsop(f"ds_write_b128 v{CV_TID}, {v(t,4)} offset:{L_HS+32+(4*z+1)*4160}")
            for i in range(4): a(f"v_mov_b32 v{t+4+i}, v{d+i+1}")
            a.dsop(f"ds_write_b128 v{CV_TID}, {v(t+4,4)} offset:{L_HS+32+(4*z+2)*4160}")
            for i in range(4): a(f"v_alignbit_b32 v{t+8+i}, v{d+i+2}, v{d+i+1}, 16")
            a.dsop(f"ds_write_b128 v{CV_TID}, {v(t+8,4)} offset:{L_HS+32+(4*z+3)*4160}")
        a.dsop(f"ds_write_b128 v{CV_SPA}, {v(CV_SPV,4)}")
        a.dsop(f"ds_write_b16 v{CV_FXA}, v{CV_FXV}")
    def cv_kv_write(self):
        a = self.a
        a.wait_vm("cvkv")
        for z in range(3):
            a.dsop(f"ds_write_b128 v{CV_TID}, {v(CV_KV+4*z,4)} offset:{L_KV+z*4608}")
    def cv_addr2(self):
        a = self.a
        a("v_and_b32 v1, 15, v0\nv_lshrrev_b32 v2, 4, v0\nv_add_u32 v3, 1, v1\nv_and_b32 v4, 3, v3\nv_sub_u32 v3, v3, v4")
        a("v_mul_u32_u24 v4, 4160, v4\nv_lshl_add_u32 v4, v3, 1, v4\nv_lshl_add_u32 v4, v2, 4, v4")
        a("v_lshlrev_b32 v5, 4, v2\nv_lshlrev_b32 v3, 5, v1\nv_sub_u32 v5, v5, v3")
        a(f"s_lshr_b32 s66, {WV}, 1\ns_lshl_b32 s67, s66, 8")
        a(f"s_add_u32 s68, s67, {L_HS + 8*4160}\nv_add_u32 v6, s68, v4")
        a(f"s_add_u32 s68, s67, {L_KV + 2*4608 + 480}\nv_add_u32 v7, s68, v5")
        a(f"s_mul_i32 s68, s66, {4*4160}\ns_add_u32 s68, s68, {L_HS}\nv_add_u32 v4, s68, v4")
        a(f"s_mul_i32 s68, s66, 4608\ns_add_u32 s68, s68, {L_KV + 480}\nv_add_u32 v5, s68, v5")
        a(f"v_lshlrev_b32 v10, 4, v0\ns_lshl_b32 s68, {WV}, 13\ns_add_u32 s68, s68, {L_PX}\nv_add_u32 v8, s68, v10")
        a(f"s_xor_b32 s68, {WV}, 1\ns_lshl_b32 s68, s68, 13\ns_add_u32 s68, s68, {L_PX}\nv_add_u32 v9, s68, v10")
        a(f"s_lshl_b32 s68, s66, 11\ns_add_u32 s68, s68, {L_PX + 8192 + 4096}\nv_add_u32 v10, s68, v10")
        a("v_lshrrev_b32 v11, 5, v0\nv_lshlrev_b32 v11, 4, v11\nv_add_u32 v11, v11, v3\nv_and_b32 v2, 1, v2")
        a("s_and_b32 s68, s2, 1\ns_lshl_b32 s69, s68, 1\ns_sub_u32 s69, 3, s69\ns_lshl_b32 s69, s69, 9")
        a("v_mul_u32_u24 v12, s69, v2\nv_add_u32 v12, v12, v11")
        a(f"s_lshl2_add_u32 s68, s66, s68\ns_lshl_b32 s68, s68, 9\ns_add_u32 s68, s68, s83\ns_add_u32 s68, s68, {WS_YT}\nv_add_u32 v12, s68, v12")
        a("v_lshl_add_u32 v11, v2, 9, v11")
        a(f"s_lshl_b32 s68, {WV}, 11\ns_add_u32 s68, s68, s81\ns_add_u32 s68, s68, {WS_YT}\nv_add_u32 v11, s68, v11")

    def cv_reads(self, step):
        ab, bb, b, tiles, buf, D = step
        n = max(tiles) + 1
        A = 96 + 64 * buf; B = A + 32
        L = []
        for i in range(n):
            L.append(f"ds_read_b64 {v(A+4*i,2)}, v{ab} offset:{512*i+64*b}")
            L.append(f"ds_read_b64 {v(A+4*i+2,2)}, v{ab} offset:{512*i+64*b+8}")
            L.append(f"ds_read_b128 {v(B+4*i,4)}, v{bb} offset:{512*(7-i)+64*b}")
        return L
    def cv_steps(self, steps, first_issued=False, extra=None, hook=None):
        a = self.a
        extra = extra or {}
        hook = hook or (lambda si, mi: None)
        if not first_issued:
            for t in self.cv_reads(steps[0]): a.dsop(t)
        started = set()
        for si, st in enumerate(steps):
            if st is None: continue
            ab, bb, b, tiles, buf, D = st
            A = 96 + 64 * buf; B = A + 32
            nxt = self.cv_reads(steps[si + 1]) if si + 1 < len(steps) else []
            ex = list(extra.get(si, []))
            ms = [(aa, j) for aa in range(8) for j in tiles if j >= aa]
            if len(tiles) == 8: ms[-3], ms[-2] = ms[-2], ms[-3]
            a("s_waitcnt lgkmcnt(0)")
            per = 1 if len(tiles) == 8 else 2
            for mi, (aa, j) in enumerate(ms):
                d = D + 4 * tiles.index(j)
                c = v(d, 4) if d in started else "0"
                started.add(d)
                a(f"v_mfma_f32_16x16x32_bf16 {v(d,4)}, {v(A+4*aa,4)}, {v(B+4*(j-aa),4)}, {c}")
                k = 0
                while nxt and k < per:
                    a.dsop(nxt.pop(0)); k += 1
                if not nxt and k == 0 and ex:
                    a.dsop(ex.pop(0))
                hook(si, mi)
            assert not nxt and not ex, (len(nxt), len(ex))

    def cv_fin(self, pairs):
        a = self.a
        for (X, Y, PXs, PYs, vo, off, tg) in pairs:
            a.wait_lg(tg)
            for D, Ps in ((X, PXs), (Y, PYs)):
                for Pp in Ps:
                    a(f"v_pk_add_f32 {v(D,2)}, {v(D,2)}, {v(Pp,2)}\nv_pk_add_f32 {v(D+2,2)}, {v(D+2,2)}, {v(Pp+2,2)}")
            O = PXs[0]
            a(f"v_cvt_pk_bf16_f32 v{O}, v{X}, v{X+1}\nv_cvt_pk_bf16_f32 v{O+2}, v{Y}, v{Y+1}")
            a(f"v_cvt_pk_bf16_f32 v{O+1}, v{X+2}, v{X+3}\nv_cvt_pk_bf16_f32 v{O+3}, v{Y+2}, v{Y+3}")
            a(f"v_permlane16_swap_b32 v{O}, v{O+2}\nv_permlane16_swap_b32 v{O+1}, v{O+3}")
            a.vmem(f"buffer_store_dwordx4 {v(O,4)}, v{vo}, {R(SWS)}, 0 offen offset:{off} sc1")

    def cv_main(self, hook=None):
        a = self.a
        DM, DC = 32, 64
        full = list(range(8))
        Lodd, Loo, Lj1, LJ = a.label("Lcvo"), a.label("Lcvoo"), a.label("Lcvj"), a.label("Lcvj")
        a("s_waitcnt lgkmcnt(0)\ns_barrier")
        a(f"s_bitcmp1_b32 {WV}, 0\ns_cbranch_scc1 {Lodd}")
        s0 = a.snap(); outs = []
        self.cv_steps([(4, 5, b, full, b & 1, DM) for b in range(5)], hook=hook and hook(0))
        for i in range(4): a.dsop(f"ds_write_b128 v8, {v(DM+16+4*i,4)} offset:{1024*i}")
        a("s_waitcnt lgkmcnt(0)\ns_barrier")
        for i in range(4): a.dsop(f"ds_read_b128 {v(96+4*i,4)}, v9 offset:{1024*i}", tag=f"px{i}")
        for i in range(4): a.dsop(f"ds_read_b128 {v(112+4*i,4)}, v10 offset:{1024*(i&1)+16384*(i>>1)}", tag=f"px{4+i}")
        self.cv_fin([(DM, DM+4, [96], [100], 11, 0, "px1"), (DM+8, DM+12, [104], [108], 11, 1024, "px3"), (112, 116, [120], [124], 12, 0, "px7")])
        a(f"s_nop 1\ns_branch {LJ}")
        outs.append(a.snap()); a.restore(s0)
        a(f"{Lodd}:")
        a(f"s_bitcmp1_b32 s2, 0\ns_cbranch_scc1 {Loo}")
        o2 = []
        for par, tiles in ((0, [0, 3, 4, 7]), (1, [1, 2, 5, 6])):
            if par: a(f"{Loo}:")
            st = [(4, 5, b, full, (b - 5) & 1, DM) for b in (5, 6, 7)] + [(6, 7, b, tiles, (b + 1) & 1, DC) for b in range(4)]
            ex = {3: [f"ds_write_b128 v8, {v(DM+4*i,4)} offset:{1024*i}" for i in range(4)]}
            self.cv_steps(st, extra=ex, hook=hook and hook(1))
            for i in range(4): a.dsop(f"ds_write_b128 v8, {v(DC+4*i,4)} offset:{4096+1024*i}")
            if not par: a(f"s_branch {Lj1}")
            o2.append(a.snap()); a.restore(s0)
        a(f"{Lj1}:")
        a.merge(o2)
        a("s_waitcnt lgkmcnt(0)\ns_barrier")
        for i in range(4): a.dsop(f"ds_read_b128 {v(96+4*i,4)}, v9 offset:{1024*i}", tag=f"px{i}")
        self.cv_fin([(DM+16, DM+20, [96], [100], 11, 0, "px1"), (DM+24, DM+28, [104], [108], 11, 1024, "px3")])
        outs.append(a.snap())
        a(f"{LJ}:")
        a.merge(outs)
        a.mark("yst")

    def conv_all(self):
        a = self.a
        self.cv_addr(); a("s_waitcnt lgkmcnt(0)")
        self.cv_h_loads(); self.cv_kv_loads(); self.cv_addr2(); self.cv_special(); self.cv_h_write(); self.cv_kv_write()
        self.cv_main()

    def g2_w2f_addr(self, vr):
        a = self.a
        a(f"s_mul_i32 s66, {NT2}, {48*5120}\ns_mul_i32 s67, {WV}, {12*5120}\ns_add_u32 s66, s66, s67\ns_add_u32 s66, s66, {WS_W2F}")
        a(f"v_lshlrev_b32 v{vr}, 4, v0\nv_add_u32 v{vr}, s66, v{vr}")
    def g2_w2f_list(self, vr):
        L = []
        for i in range(60):
            if i % 4 == 0: L.append((f"s_movk_i32 s84, {i*1024}" if i * 1024 < 32768 else f"s_mov_b32 s84, {i*1024}", 0))
            L.append((f"buffer_load_dwordx4 {ar(4*i,4)}, v{vr}, {R(SWS)}, s84 offen offset:{(i%4)*1024} sc1", 1))
        return L
    def g2_addr(self):
        a = self.a
        a(f"s_mul_i32 s66, {MT2}, {4*49152}\ns_mul_i32 s67, {WV}, 12288\ns_add_u32 s66, s66, s67\ns_add_u32 s66, s66, {WS_H}")
        a("v_lshlrev_b32 v1, 4, v0\nv_add_u32 v4, s66, v1")
        for i in range(4):
            a(f"s_add_u32 s66, {WV}, {i+1}\ns_and_b32 s66, s66, 3\ns_mul_i32 s{85+i}, s66, 49152\ns_mul_i32 s66, s66, 15360")
            a(f"s_add_u32 s66, s66, {L_PT + (2-i)*5120 if i < 3 else L_PT}\nv_add_u32 v{5+i}, s66, v1")
        a("v_lshrrev_b32 v1, 4, v0\nv_mul_u32_u24 v12, 40, v1\nv_mul_u32_u24 v1, 20, v1\nv_bfe_u32 v2, v0, 2, 2\nv_add_u32 v1, v1, v2")
        a(f"v_and_b32 v2, 6, v1\nv_bfe_u32 v3, v0, 1, 1\ns_lshl_b32 s66, {WV}, 1\nv_or_b32 v3, s66, v3\nv_xor_b32 v2, v2, v3")
        a(f"v_lshlrev_b32 v1, 7, v1\nv_lshl_add_u32 v1, v2, 4, v1\nv_and_b32 v2, 1, v0\nv_lshl_add_u32 v1, v2, 3, v1\nv_add_u32 v9, {L_Y}, v1\nv_xor_b32 v14, 64, v9")
        a(f"s_mul_i32 s66, {NT2}, 80\ns_mul_i32 s67, {WV}, 24\ns_add_u32 s66, s66, s67\ns_lshl_b32 s66, s66, 12\ns_lshl_b32 s67, {MT2}, 7\ns_add_u32 s66, s66, s67\ns_add_u32 s66, s66, {WS_YT}")
        a("v_lshrrev_b32 v1, 3, v0\nv_and_b32 v2, 6, v1\nv_and_b32 v3, 7, v0\nv_xor_b32 v2, v2, v3\nv_lshlrev_b32 v1, 12, v1\nv_lshl_add_u32 v1, v2, 4, v1\nv_add_u32 v10, s66, v1")
        a(f"s_lshl2_add_u32 s66, {MT2}, {WV}\ns_lshl_b32 s66, s66, 4\nv_and_b32 v1, 15, v0\nv_add_u32 v1, s66, v1")
        a(f"s_mul_i32 s67, {NT2}, 160\nv_add_u32 v12, s67, v12\nv_mul_u32_u24 v11, 1280, v1\nv_add_u32 v11, v11, v12")
        a(f"v_lshlrev_b32 v13, 3, v1\nv_add_u32 v13, {WS_ST+4}, v13")
    def g2_h_list(self, i):
        L = []
        for k in range(12):
            if k % 4 == 0: L.append((f"s_add_u32 s89, s{85+i}, {k*1024}", 0))
            L.append((f"buffer_load_dwordx4 {v(64+48*i+4*k,4)}, v4, {R(SWS)}, s89 offen offset:{(k%4)*1024} sc1", 1, f"h{i}_{k}"))
        return L
    def g2_misc_list(self):
        Q, B2 = 64, 76
        L = [(f"buffer_load_dwordx4 {v(Q,4)}, v11, {R(SQ)}, 0 offen", 1), (f"buffer_load_dwordx4 {v(Q+4,4)}, v11, {R(SQ)}, 0 offen offset:16", 1),
             (f"buffer_load_dwordx2 {v(Q+8,2)}, v11, {R(SQ)}, 0 offen offset:32", 1),
             (f"buffer_load_dwordx4 {v(B2,4)}, v12, {R(SB2)}, 0 offen", 1), (f"buffer_load_dwordx4 {v(B2+4,4)}, v12, {R(SB2)}, 0 offen offset:16", 1),
             (f"buffer_load_dwordx2 {v(B2+8,2)}, v12, {R(SB2)}, 0 offen offset:32", 1),
             (f"buffer_load_dword v15, v13, {R(SWS)}, 0 offen sc1", 1, "misc")]
        return L
    def g2_y_list(self):
        L = [(f"s_mul_i32 s66, {WV}, 3072", 0), (f"s_add_u32 m0, s66, {L_Y}", 0)]
        L.append((f"buffer_load_dwordx4 v10, {R(SWS)}, 0 offen sc1 lds", 1))
        L += [(f"s_add_u32 m0, m0, 1024", 0), ("s_mov_b32 s66, 32768", 0), (f"buffer_load_dwordx4 v10, {R(SWS)}, s66 offen sc1 lds", 1)]
        L += [(f"s_add_u32 m0, m0, 1024", 0), ("s_mov_b32 s66, 65536", 0), (f"buffer_load_dwordx4 v10, {R(SWS)}, s66 offen sc1 lds", 1, "y")]
        return L
    def emit(self, L):
        for e in L:
            if e[1]: self.a.vmem(e[0], tag=e[2] if len(e) > 2 else None)
            else: self.a(e[0])
    def g2_main(self, wtags=None, ypoll=None):
        a = self.a
        Q, B2, YR, PR = 64, 76, 88, 112
        side = {}
        def at(st, mi, f): side.setdefault((st, mi), []).append(f)
        for i in range(3):
            D = 24 + 20 * (i & 1)
            for j in range(5):
                at(i + 1, 4 + j, lambda i=i, j=j, D=D: a.dsop(f"ds_write_b128 v{5+i}, {v(D+4*j,4)} offset:{1024*j}"))
        ml = self.g2_misc_list()
        for n, e in enumerate(ml): at(1, 10 + 2 * n, lambda e=e: self.emit([e]))
        if ypoll: ypoll(at)
        at(2, 30, lambda: self.emit(self.g2_y_list()))
        def bar():
            a.wait_vm("y", lg=0); a("s_barrier")
        at(3, 12, bar)
        k = 13
        for o in range(3):
            for j in range(5):
                at(3, k, lambda o=o, j=j: a.dsop(f"ds_read_b128 {v(PR+20*o+4*j,4)}, v8 offset:{5120*o+1024*j}", tag=f"pr{o}")); k += 1
        for j in range(5):
            at(3, k, lambda j=j: a.dsop(f"ds_read_b64_tr_b16 {v(YR+2*j,2)}, v{14 if j&1 else 9} offset:{512*j}", tag="yr")); k += 1
        U = 176
        def unpack_b2(i):
            a(f"v_lshlrev_b32 v{U+2*i}, 16, v{B2+i}\nv_and_b32 v{U+2*i+1}, 0xffff0000, v{B2+i}")
        for i in range(10): at(3, 1 + i, (lambda i=i: (a.wait_vm("misc") if i == 0 else None, unpack_b2(i))))
        def addp(o, i):
            if i == 0: a.wait_lg(f"pr{o}")
            a(f"v_pk_add_f32 {v(U+4*i,2)}, {v(U+4*i,2)}, {v(PR+20*o+4*i,2)}\nv_pk_add_f32 {v(U+4*i+2,2)}, {v(U+4*i+2,2)}, {v(PR+20*o+4*i+2,2)}")
        k = 30
        for o in range(3):
            for i in range(5): at(3, k, lambda o=o, i=i: addp(o, i)); k += 1
        def aterm(i):
            if i == 0:
                a.wait_lg("yr")
                a("v_lshlrev_b32 v16, 16, v15\nv_and_b32 v18, 0xffff0000, v15\nv_mov_b32 v17, v16\nv_mov_b32 v19, v18")
            T = PR + 2 * i; X = PR + 20 + 2 * i
            a(f"v_lshlrev_b32 v{T}, 16, v{Q+i}\nv_and_b32 v{T+1}, 0xffff0000, v{Q+i}")
            a(f"v_lshlrev_b32 v{X}, 16, v{YR+i}\nv_and_b32 v{X+1}, 0xffff0000, v{YR+i}")
        def aterm2(i):
            T = PR + 2 * i; X = PR + 20 + 2 * i
            a(f"v_pk_mul_f32 {v(T,2)}, {v(T,2)}, {v(X,2)}\nv_pk_mul_f32 {v(U+2*i,2)}, {v(U+2*i,2)}, v[18:19]")
            a(f"v_pk_fma_f32 {v(U+2*i,2)}, {v(T,2)}, v[16:17], {v(U+2*i,2)}")
        for i in range(10):
            at(3, 45 + i, lambda i=i: aterm(i))
            at(3, 46 + i if i < 9 else 55, lambda i=i: aterm2(i))
        for st in range(4):
            D = 24 + 20 * (st & 1)
            for kk in range(12):
                if st == 0 and wtags: a.wait_vm(wtags(kk))
                a.wait_vm(f"h{st}_{kk}")
                for j in range(5):
                    c = v(D + 4 * j, 4) if kk else "0"
                    a(f"v_mfma_f32_16x16x32_bf16 {v(D+4*j,4)}, {ar((kk*5+j)*4,4)}, {v(64+48*st+4*kk,4)}, {c}")
                    for f in side.pop((st, kk * 5 + j), []): f()
        assert not side, side.keys()
        D = 44
        for i in range(10): a(f"v_pk_fma_f32 {v(U+2*i,2)}, {v(D+2*i,2)}, v[18:19], {v(U+2*i,2)}")
        for i in range(10):
            a(f"v_cvt_pk_bf16_f32 v{Q+i}, v{U+2*i}, v{U+2*i+1}")
            if i == 3: a.vmem(f"buffer_store_dwordx4 {v(Q,4)}, v11, {R(SO)}, 0 offen")
            if i == 7: a.vmem(f"buffer_store_dwordx4 {v(Q+4,4)}, v11, {R(SO)}, 0 offen offset:16")
        a.vmem(f"buffer_store_dwordx2 {v(Q+8,2)}, v11, {R(SO)}, 0 offen offset:32")
    def g2_all(self):
        a = self.a
        self.g2_w2f_addr(20); self.g2_addr(); a("s_waitcnt lgkmcnt(0)")
        W = self.g2_w2f_list(20); H = self.g2_h_list(0)
        nw = 0
        for kk in range(12):
            while nw < 5 * kk + 5:
                e = W.pop(0); self.emit([e]); nw += e[1]
            while True:
                e = H.pop(0); self.emit([e])
                if e[1]: break
        for i in range(1, 4): self.emit(self.g2_h_list(i))
        self.g2_main()

def kern(name, g, vg=256, ag=256):
    return dict(name=name, grid=(256, 1, 1), block=256, lds=163840, body=g.a.text(), vgpr=vg, agpr=ag, sgpr=100)

def build_split(which):
    ks = []
    if "p" in which:
        g = Gen("p", False); g.prologue(); g.phase_p(); g.epilogue(); ks.append(kern("p_kernel", g))
    if "g1" in which:
        g = Gen("g1", False); g.prologue(); g.g1_addr(); g.a("s_waitcnt lgkmcnt(0)")
        g.g1_b1()
        for n in range(5): g.g1_dma(n)
        g.g1_stats_load()
        g.g1_addr2(); g.g1_b1_store(); g.g1_loop(); g.g1_finish(); g.epilogue(); ks.append(kern("g1_kernel", g))
    if "cv" in which:
        g = Gen("cv", False); g.prologue(); g.conv_all(); g.epilogue(); ks.append(kern("cv_kernel", g))
    if "g2" in which:
        g = Gen("g2", False); g.prologue(); g.g2_all(); g.epilogue(); ks.append(kern("g2_kernel", g))
    return build_file(ks)

if __name__ == "__main__":
    out = sys.argv[1]; which = sys.argv[2].split(",")
    open(out, "w").write(build_split(which))
```

```python
import sys; sys.path.insert(0, "gen")
from kasm import *

WS_KVR = 0; WS_H = 0x300000; WS_W2F = 0x900000; WS_YT = 0xB00000; WS_ST = 0xE00000; WS_FL = 0xE10000; WS_SIZE = 0xE20000
SQ, SK, SV, SW1, SW2, SWS, SH, SO, SDBG, SSH, SGW, SB1, SB2, SD = 4, 8, 12, 16, 20, 24, 28, 32, 36, 40, 44, 48, 52, 56
def R(s): return f"s[{s}:{s+3}]"
WV, MT, NT, MT2, NT2, NONCE = "s60", "s61", "s62", "s63", "s64", "s65"
L_X = 0; L_W1 = 81920; L_SP = 143360; L_T = L_SP + 10240
L_HS = 0; L_KV = 49920; L_PX = 65536
L_PT = 0; L_Y = 98304
G2Q, G2B2 = 208, 220
def HB(i): return 208 - 48 * i
CV_TID, CV_SPA, CV_FXA, CV_FXV, CV_SPV, CV_H, CV_KV = 252, 253, 254, 255, 244, 208, 232
def v(a, n=1): return f"v{a}" if n == 1 else f"v[{a}:{a+n-1}]"
def ar(a, n=1): return f"a{a}" if n == 1 else f"a[{a}:{a+n-1}]"

class Gen:
    def __init__(self, name, fused):
        self.a = K(); self.name = name; self.fused = fused
        self.end = "L_end_" + name

    def prologue(self):
        a = self.a
        a(f"s_cmp_ge_u32 s2, 256\ns_cbranch_scc1 {self.end}")
        for s, off, nb in ((SK, 8, 2621440), (SV, 16, 2621440), (SSH, 24, 5120), (SQ, 0, 2621440), (SW1, 56, 1966080), (SW2, 72, 1966080),
                           (SWS, 112, WS_SIZE), (SGW, 88, 1280), (SB1, 64, 3072), (SH, 32, 2621440), (SD, 40, 1280),
                           (SO, 96, 2621440), (SDBG, 104, 256), (SB2, 80, 1280)):
            a(f"s_load_dwordx2 s[{s}:{s+1}], s[0:1], {off}")
        for s, off, nb in ((SK, 8, 2621440), (SV, 16, 2621440), (SSH, 24, 5120), (SQ, 0, 2621440), (SW1, 56, 1966080), (SW2, 72, 1966080),
                           (SWS, 112, WS_SIZE), (SGW, 88, 1280), (SB1, 64, 3072), (SH, 32, 2621440), (SD, 40, 1280),
                           (SO, 96, 2621440), (SDBG, 104, 256), (SB2, 80, 1280)):
            a(f"s_mov_b32 s{s+2}, {nb}\ns_mov_b32 s{s+3}, 0x00020000")
        a("v_lshrrev_b32 v1, 6, v0\nv_and_b32 v0, 63, v0")
        a(f"v_readfirstlane_b32 {WV}, v1")
        a("s_lshr_b32 s66, s2, 1\ns_and_b32 s66, s66, 3")
        a("s_and_b32 s67, s2, 1")
        a("s_lshr_b32 s68, s2, 3")
        a(f"s_lshr_b32 s69, s68, 3\ns_lshl2_add_u32 {MT}, s66, s69")
        a(f"s_and_b32 s69, s68, 7\ns_lshl3_add_u32 {NT}, s67, s69")
        a(f"s_lshr_b32 s69, s68, 2\ns_lshl3_add_u32 {MT2}, s66, s69")
        a(f"s_and_b32 s69, s68, 3\ns_lshl2_add_u32 {NT2}, s67, s69")

    def epilogue(self):
        self.a(f"{self.end}:\ns_endpgm")

    def p_addr(self):
        a = self.a
        a("v_and_b32 v1, 7, v0\nv_lshrrev_b32 v2, 3, v0")
        a(f"s_mul_i32 s66, {MT2}, 81920\ns_mul_i32 s67, {NT2}, 160\ns_add_u32 s66, s66, s67\ns_lshl_b32 s67, {WV}, 5\ns_add_u32 s66, s66, s67")
        a("v_mul_u32_u24 v36, 10240, v1\nv_lshl_add_u32 v36, v2, 2, v36\nv_add_u32 v36, s66, v36")
        a("v_subrev_u32 v37, 3840, v36\nv_cmp_le_i32 vcc, 0, v37\nv_cndmask_b32 v37, 0x80000000, v37, vcc".replace("0x80000000", "v3"))
        a.lines.insert(-3, "    v_mov_b32 v3, 0x80000000")
        a(f"s_mul_i32 s66, {NT2}, 640\ns_lshl_b32 s67, {WV}, 7\ns_add_u32 s66, s66, s67")
        a("v_lshlrev_b32 v38, 4, v2\nv_add_u32 v38, s66, v38")
        a(f"s_mul_i32 s66, {NT2}, {80*4096}\ns_lshl_b32 s67, {WV}, 16\ns_add_u32 s66, s66, s67\ns_lshl_b32 s67, {MT2}, 7\ns_sub_u32 s66, s66, s67\ns_add_u32 s66, s66, {WS_KVR+4080}")
        a("v_lshlrev_b32 v39, 13, v2\nv_lshlrev_b32 v1, 4, v1\nv_sub_u32 v39, v39, v1\nv_add_u32 v39, s66, v39")
        a("s_movk_i32 s70, 5120\ns_movk_i32 s71, 4096\ns_mov_b32 s72, 262144\ns_mov_b32 s73, 266240")

    def p_item_loads(self, Rb, second, tag):
        a = self.a
        o = 128 if second else 0
        a.vmem(f"buffer_load_dwordx4 {v(Rb+20,4)}, v38, {R(SSH)}, 0 offen offset:{4*o}")
        for i in range(3):
            a.vmem(f"buffer_load_dword v{Rb+i}, v37, {R(SK)}, 0 offen offset:{i*1280+o}")
        for i in range(8):
            a.vmem(f"buffer_load_dword v{Rb+3+i}, v36, {R(SK)}, {'s70' if i >= 4 else '0'} offen offset:{(i&3)*1280+o}")
        a.mark(tag + "k")
        for i in range(8):
            a.vmem(f"buffer_load_dword v{Rb+11+i}, v36, {R(SV)}, {'s70' if i >= 4 else '0'} offen offset:{(i&3)*1280+o}")
        a.mark(tag)

    def p_item_compute(self, Rb, Ob, second, tag):
        a = self.a
        KP, SP, AC = 96, 118, 126
        a.wait_vm(tag + "k")
        for j in range(4):
            for c in range(2):
                src = Rb + 20 + 2 * c + (j >> 1)
                if j & 1: a(f"v_and_b32 v{SP+2*j+c}, 0xffff0000, v{src}")
                else: a(f"v_lshlrev_b32 v{SP+2*j+c}, 16, v{src}")
        for i in range(11):
            a(f"v_lshlrev_b32 v{KP+2*i}, 16, v{Rb+i}\nv_and_b32 v{KP+2*i+1}, 0xffff0000, v{Rb+i}")
        for j in (3, 2, 1, 0):
            for i in range(8):
                kp = KP + 2 * (i + 3 - j)
                if j == 3: a(f"v_pk_mul_f32 {v(AC+2*i,2)}, {v(kp,2)}, {v(SP+2*j,2)}")
                else: a(f"v_pk_fma_f32 {v(AC+2*i,2)}, {v(kp,2)}, {v(SP+2*j,2)}, {v(AC+2*i,2)}")
        a.wait_vm(tag)
        for i in range(8):
            a(f"v_lshlrev_b32 v{KP+2*i}, 16, v{Rb+11+i}\nv_and_b32 v{KP+2*i+1}, 0xffff0000, v{Rb+11+i}")
        for i in range(8):
            a(f"v_pk_mul_f32 {v(AC+2*i,2)}, {v(AC+2*i,2)}, {v(KP+2*i,2)}")
        for c in range(2):
            for m in range(4):
                a(f"v_cvt_pk_bf16_f32 v{Ob+4*c+m}, v{AC+2*(7-2*m)+c}, v{AC+2*(6-2*m)+c}")
            so = (("0", "s71"), ("s72", "s73"))[second][c]
            a.vmem(f"buffer_store_dwordx4 {v(Ob+4*c,4)}, v39, {R(SWS)}, {so} offen sc1")

    def p_stats_loads(self):
        a = self.a
        a(f"s_lshl_b32 s66, s2, 3\ns_lshl2_add_u32 s66, {WV}, s66\ns_sub_u32 s66, s66, 8")
        a("v_lshrrev_b32 v40, 4, v0\nv_add_u32 v40, s66, v40")
        a("v_and_b32 v41, 15, v0\nv_lshlrev_b32 v41, 4, v41")
        a("v_mul_u32_u24 v42, 1280, v40\nv_add_u32 v42, v42, v41")
        for n in range(5):
            a.vmem(f"buffer_load_dwordx4 {v(208+4*n,4)}, v42, {R(SQ)}, 0 offen offset:{256*n}")
        for n in range(5):
            a.vmem(f"buffer_load_dwordx4 {v(228+4*n,4)}, v41, {R(SGW)}, 0 offen offset:{256*n}")
        a.mark("stat")

    def p_stats_compute(self):
        a = self.a
        a("v_mov_b32 v43, 0x3f803f80\nv_mov_b32 v44, 0\nv_mov_b32 v45, 0\nv_mov_b32 v46, 0")
        a.wait_vm("stat")
        for i in range(20):
            a(f"v_dot2c_f32_bf16 v44, v{208+i}, v43")
            a(f"v_dot2c_f32_bf16 v45, v{208+i}, v{208+i}")
            a(f"v_dot2c_f32_bf16 v46, v{208+i}, v{228+i}")
        for sh in (8, 4, 2, 1):
            for r in (44, 45, 46):
                a(f"v_add_f32_dpp v{r}, v{r}, v{r} row_ror:{sh} row_mask:0xf bank_mask:0xf")
        inv = "0x3acccccd"
        a(f"v_mul_f32 v44, {inv}, v44\nv_mul_f32 v45, {inv}, v45")
        a("v_fma_f32 v45, -v44, v44, v45\nv_max_f32 v45, 0, v45")
        a("v_cvt_pk_bf16_f32 v45, v45, v46")
        a("v_and_b32 v46, 0xffff0000, v45\nv_lshlrev_b32 v45, 16, v45")
        a("v_add_f32 v45, 0x3727c5ac, v45")
        a("v_mul_f32 v46, 0xbfb8aa3b, v46")
        a("v_cvt_pk_bf16_f32 v45, v45, v45\nv_exp_f32 v46, v46")
        a("v_lshlrev_b32 v45, 16, v45\nv_add_f32 v46, 1.0, v46")
        a("v_sqrt_f32 v45, v45\nv_rcp_f32 v46, v46")
        a("v_cvt_pk_bf16_f32 v44, -v44, v45")
        a("v_cvt_pk_bf16_f32 v46, v46, v46\nv_lshlrev_b32 v46, 16, v46")
        a("v_sub_f32 v45, 1.0, v46\nv_cvt_pk_bf16_f32 v45, v46, v45")
        a(f"v_lshlrev_b32 v40, 3, v40\nv_add_u32 v40, {WS_ST}, v40")
        a("v_cmp_eq_u32 vcc, 0, v41\ns_and_saveexec_b64 s[66:67], vcc")
        a.vmem(f"buffer_store_dwordx2 v[44:45], v40, {R(SWS)}, 0 offen sc1")
        a("s_mov_b64 exec, s[66:67]")

    def p_w2f_loads(self):
        a = self.a
        a("s_lshr_b32 s66, s2, 2\ns_mul_i32 s66, s66, 40960\ns_and_b32 s67, s2, 3\ns_mul_i32 s67, s67, 320\ns_add_u32 s66, s66, s67")
        for n in range(5):
            a(f"v_add_u32 v1, {64*n}, v0\nv_mul_u32_u24 v2, 3277, v1\nv_lshrrev_b32 v2, 16, v2")
            a(f"v_mul_u32_u24 v2, 960, v2\nv_lshl_add_u32 v2, v1, 4, v2\nv_add_u32 v{40+n}, s66, v2")
        a("s_movk_i32 s74, 20480")
        for n in range(10):
            a(f"s_mov_b32 m0, {L_SP + 1024*n}")
            a.vmem(f"buffer_load_dwordx4 v{40+n%5}, {R(SW2)}, {'s74' if n >= 5 else '0'} offen lds")
        a.mark("w2f")

    def p_w2f_compute(self):
        a = self.a
        a("v_lshrrev_b32 v1, 5, v0\nv_bfe_u32 v2, v0, 2, 3\nv_lshl_add_u32 v1, v1, 4, v2")
        a("v_mul_u32_u24 v1, 320, v1\nv_and_b32 v2, 3, v0\nv_mul_u32_u24 v2, 40, v2")
        a(f"v_add3_u32 v1, v1, v2, 0\nv_add_u32 v1, {L_SP}, v1")
        a(f"s_and_b32 s66, s2, 3\ns_mul_i32 s66, s66, {2*48*5120}\ns_lshr_b32 s67, s2, 2\ns_mul_i32 s67, s67, 5120\ns_add_u32 s66, s66, s67\ns_add_u32 s66, s66, {WS_W2F}")
        a("v_lshlrev_b32 v2, 4, v0\nv_add_u32 v2, s66, v2")
        a(f"s_movk_i32 s74, 4096\ns_mov_b32 s75, {48*5120}\ns_mov_b32 s76, {48*5120+4096}")
        a.wait_vm("w2f")
        for half in range(2):
            for j in range(5):
                d = 208 + (half * 5 + j) * 4
                a.dsop(f"ds_read_b64_tr_b16 {v(d,2)}, v1 offset:{160*half+8*j}")
                a.dsop(f"ds_read_b64_tr_b16 {v(d+2,2)}, v1 offset:{160*half+8*j+2560}", tag=f"w2f{half}{j}")
            for j in range(5):
                d = 208 + (half * 5 + j) * 4
                a.wait_lg(f"w2f{half}{j}")
                so = (("0", "s74"), ("s75", "s76"))[half][j >> 2]
                a.vmem(f"buffer_store_dwordx4 {v(d,4)}, v2, {R(SWS)}, {so} offen offset:{(j&3)*1024} sc1")

    def phase_p(self, pre=None, post=None):
        a = self.a
        pre = pre or (lambda: None); post = post or (lambda: None)
        self.p_addr()
        L1, L23, LJ = a.label("Lp1"), a.label("Lp23"), a.label("Lpj")
        a("s_waitcnt lgkmcnt(0)")
        a(f"s_cmp_eq_u32 {WV}, 1\ns_cbranch_scc1 {L1}\ns_cmp_gt_u32 {WV}, 1\ns_cbranch_scc1 {L23}")
        s0 = a.snap(); outs = []
        self.p_item_loads(144, False, "pa"); self.p_item_loads(168, True, "pb")
        pre()
        self.p_item_compute(144, 192, False, "pa"); self.p_item_compute(168, 200, True, "pb")
        a.mark("pst")
        post()
        a(f"s_nop 1\ns_branch {LJ}")
        outs.append(a.snap()); a.restore(s0)
        a(f"{L1}:")
        Lno, Lno2 = a.label("Lpno"), a.label("Lpno")
        self.p_item_loads(144, False, "pa")
        a(f"s_cmp_ge_u32 s2, 192\ns_cbranch_scc1 {Lno}")
        s1 = a.snap()
        self.p_w2f_loads()
        a("s_nop 1")
        a(f"{Lno}:")
        w = a.vm["w2f"]; a.merge([a.snap(), s1]); a.vm["w2f"] = w
        pre()
        self.p_item_compute(144, 192, False, "pa")
        a(f"s_cmp_ge_u32 s2, 192\ns_cbranch_scc1 {Lno2}")
        s1 = a.snap()
        self.p_w2f_compute()
        a(f"{Lno2}:")
        a.merge([a.snap(), s1])
        a.mark("pst")
        post()
        a(f"s_nop 1\ns_branch {LJ}")
        outs.append(a.snap()); a.restore(s0)
        a(f"{L23}:")
        self.p_item_loads(144, False, "pa")
        self.p_stats_loads()
        pre()
        self.p_item_compute(144, 192, False, "pa")
        self.p_stats_compute()
        a.mark("pst")
        post()
        outs.append(a.snap())
        a(f"{LJ}:")
        a.merge(outs)

    def g1_addr(self):
        a = self.a
        a(f"s_lshl_b32 s66, {MT}, 2\ns_add_u32 s66, s66, {WV}\ns_mul_i32 s66, s66, {32*1280}")
        a("v_lshrrev_b32 v1, 3, v0\nv_mul_u32_u24 v1, 1280, v1\nv_add_u32 v1, s66, v1")
        a("v_and_b32 v2, 7, v0\nv_lshrrev_b32 v3, 4, v0\nv_xor_b32 v2, v2, v3")
        a("v_lshl_add_u32 v4, v2, 4, v1")
        a(f"v_xor_b32 v2, 4, v2\nv_lshl_add_u32 v5, v2, 4, v1\nv_add_u32 v5, {10240-1024}, v5")
        a(f"v_add_u32 v6, {20480-2048}, v4\nv_add_u32 v7, {20480-2048}, v5")
        a(f"s_mul_i32 s66, {WV}, 192\ns_mul_i32 s67, {NT}, 192")
        for i in range(3):
            a(f"v_add_u32 v1, s66, v0")
            if i: a(f"v_add_u32 v1, {64*i}, v1")
            a("v_mul_u32_u24 v2, 5462, v1\nv_lshrrev_b32 v2, 16, v2")
            a(f"v_mul_u32_u24 v2, {3072-192}, v2\nv_lshl_add_u32 v2, v1, 4, v2\nv_add_u32 v{8+i}, s67, v2")
            if i: a(f"v_subrev_u32 v{8+i}, {1024*i}, v{8+i}")
        a(f"s_mul_i32 s77, {WV}, 20480\ns_mul_i32 s78, {WV}, 3072\ns_add_u32 s78, s78, {L_W1}")

    def g1_addr2(self):
        a = self.a
        a("v_and_b32 v1, 31, v0\nv_lshrrev_b32 v2, 5, v0\nv_bfe_u32 v3, v0, 1, 3\nv_xor_b32 v3, v3, v2")
        a(f"s_lshl_b32 s66, {WV}, 1\nv_xor_b32 v3, s66, v3\nv_lshlrev_b32 v3, 4, v3")
        a("v_lshlrev_b32 v1, 7, v1\nv_add_u32 v1, s77, v1")
        for s in range(4):
            a(f"v_xor_b32 v{12+s}, {32*s}, v3\nv_add_u32 v{12+s}, v{12+s}, v1")
        a("v_bfe_u32 v1, v0, 2, 2\nv_lshl_add_u32 v1, v2, 3, v1\nv_mul_u32_u24 v1, 192, v1")
        a("v_bfe_u32 v3, v0, 4, 1\nv_lshl_add_u32 v1, v3, 5, v1\nv_and_b32 v3, 3, v0\nv_lshl_add_u32 v1, v3, 3, v1")
        for s in range(4):
            a(f"s_xor_b32 s66, {WV}, {s}\ns_mul_i32 s66, s66, 3072\ns_add_u32 s66, s66, {L_W1}\nv_add_u32 v{16+s}, s66, v1")
        a("v_and_b32 v1, 15, v0\nv_bfe_u32 v2, v0, 4, 1\nv_sub_u32 v1, v1, v2\nv_mov_b32 v3, 0x3f803f80")
        for t in range(3):
            a(f"v_cmp_eq_u32 vcc, {4*t}, v1\nv_cndmask_b32 v{20+4*t}, 0, v3, vcc")
            for r in range(1, 4): a(f"v_mov_b32 v{20+4*t+r}, v{20+4*t}")

    def g1_dma_list(self, n):
        slot = n % 5
        L = [(f"s_add_u32 m0, s77, {L_X + slot*4096}", 0), (f"s_movk_i32 s79, {n*128}", 0)]
        for i in range(4): L.append((f"buffer_load_dwordx4 v{4+i}, {R(SQ)}, s79 offen offset:{1024*i} lds", 1))
        L += [(f"s_add_u32 m0, s78, {slot*12288}", 0), (f"s_mov_b32 s80, {n*196608}", 0)]
        for i in range(3): L.append((f"buffer_load_dwordx4 v{8+i}, {R(SW1)}, s80 offen offset:{1024*i} lds", 1))
        return L
    def g1_dma(self, n):
        for t, isv in self.g1_dma_list(n):
            if isv: self.a.vmem(t)
            else: self.a(t)
        self.a.mark(f"st{n}")

    def g1_b1(self):
        a = self.a
        a(f"s_mul_i32 s66, {WV}, 16\ns_mul_i32 s67, {NT}, 96\nv_add_u32 v47, s66, v0")
        a("v_add_u32 v1, s67, v47\nv_lshlrev_b32 v1, 1, v1")
        a.vmem(f"buffer_load_ushort v248, v1, {R(SB1)}, 0 offen", tag="b1")
    def g1_b1_store(self):
        a = self.a
        a("v_mov_b32 v249, 0\nv_mov_b32 v250, 0\nv_mov_b32 v251, 0\nv_lshlrev_b32 v47, 5, v47")
        a.wait_vm("b1")
        a(f"v_add_u32 v47, {L_T}, v47")
        a.dsop("ds_write_b128 v47, v[248:251] offset:16")

    def g1_reads(self, q):
        n, s = q >> 2, q & 3
        fb = 96 + 16 * (q % 3); slot = n % 5
        L = [f"ds_read_b128 {v(fb+12,4)}, v{12+s} offset:{slot*4096}"]
        for t in range(3):
            for h in range(2):
                L.append(f"ds_read_b64_tr_b16 {v(fb+4*t+2*h,2)}, v{16+s} offset:{slot*12288+64*t+768*h}")
        return L

    def g1_loop(self, hook=None):
        a = self.a
        hook = hook or (lambda q, pos: None)
        a.wait_vm("st0", lg=0); a("s_barrier")
        for q in (0, 1):
            L = self.g1_reads(q)
            for i, t in enumerate(L): a.dsop(t, tag=f"rd{q}" if i == len(L) - 1 else None)
        dq = []
        for q in range(40):
            n, s = q >> 2, q & 3
            fb = 96 + 16 * (q % 3)
            rd = self.g1_reads(q + 2) if q + 2 < 40 else []
            bar = (s == 2 and n + 1 < 10)
            def mf(t):
                c = v(48 + 16 * t, 16) if q else "0"
                a(f"v_mfma_f32_32x32x16_bf16 {v(48+16*t,16)}, {v(fb+4*t,4)}, {v(fb+12,4)}, {c}")
            def cs(t):
                c = "v[32:35]" if (q or t) else "0"
                a(f"v_mfma_f32_16x16x32_bf16 v[32:35], {v(20+4*t,4)}, {v(fb+4*t,4)}, {c}")
            def rds(k):
                for _ in range(k):
                    if rd:
                        t = rd.pop(0); a.dsop(t, tag=f"rd{q+2}" if not rd else None)
            def dmas(k):
                for _ in range(k):
                    while dq and not dq[0][1]: a(dq.pop(0)[0])
                    if dq:
                        t, isv, tag = dq.pop(0); a.vmem(t, tag=tag)
            a.wait_lg(f"rd{q}")
            mf(0)
            if bar:
                mf(1)
                assert not dq
                hook(q, "prebar")
                a.wait_vm(f"st{n+1}", lg=0); a("s_barrier")
                if 1 <= n + 1 and n + 5 <= 9:
                    L = self.g1_dma_list(n + 5)
                    dq = [(t, isv, None) for t, isv in L]; dq[-1] = (dq[-1][0], 1, f"st{n+5}")
                hook(q, "bar")
                rds(3); mf(2); rds(4); dmas(1)
            else:
                rds(3); dmas(1)
                if s == 0: cs(0)
                mf(1); rds(2); dmas(1)
                if s == 0: cs(1)
                hook(q, "mid")
                mf(2); rds(2)
                if s == 0: cs(2)
                if s == 1: dmas(2)
            if q == 37:
                self.g1_cs_write()
        assert not dq

    def g1_cs_write(self):
        a = self.a
        a("v_lshrrev_b32 v1, 4, v0\nv_and_b32 v2, 15, v0\nv_lshl_add_u32 v1, v1, 5, v2\nv_lshlrev_b32 v1, 5, v1")
        a(f"s_lshl2_add_u32 s66, {WV}, {L_T}\nv_add_u32 v1, s66, v1")
        a("v_cvt_pk_bf16_f32 v2, v32, v33\nv_lshlrev_b32 v34, 16, v2\nv_and_b32 v35, 0xffff0000, v2")
        a("v_sub_f32 v32, v32, v34\nv_sub_f32 v33, v33, v35")
        a("v_cvt_pk_bf16_f32 v34, v34, v32\nv_cvt_pk_bf16_f32 v35, v35, v33")
        a.dsop("ds_write_b32 v1, v34")
        a.dsop("ds_write_b32 v1, v35 offset:512")

    def g1_stats_load(self):
        a = self.a
        a(f"s_lshl_b32 s66, {MT}, 2\ns_add_u32 s66, s66, {WV}\ns_lshl_b32 s66, s66, 8\ns_add_u32 s66, s66, {WS_ST}")
        a("v_and_b32 v1, 31, v0\nv_lshlrev_b32 v1, 3, v1\nv_add_u32 v1, s66, v1")
        a.vmem(f"buffer_load_dword v36, v1, {R(SWS)}, 0 offen sc1", tag="stats")

    def g1_finish(self, after_bar=None, ghook=None):
        a = self.a
        after_bar = after_bar or (lambda: None); ghook = ghook or (lambda g, pos: None)
        a("v_and_b32 v1, 31, v0\nv_lshrrev_b32 v2, 5, v0\nv_lshlrev_b32 v1, 5, v1\nv_lshl_add_u32 v1, v2, 4, v1")
        a(f"v_add_u32 v1, {L_T}, v1")
        a("v_mov_b32 v3, 0x02020202\nv_mul_lo_u32 v3, v3, v2\nv_add_u32 v3, 0x01000100, v3")
        a("s_waitcnt lgkmcnt(0)\ns_barrier")
        for t in range(3):
            a.dsop(f"ds_read_b128 {v(144+4*t,4)}, v1 offset:{1024*t}", tag=f"T{t}")
        a.wait_vm("stats")
        a("v_perm_b32 v40, v36, v36, v3\nv_and_b32 v38, 0xffff0000, v36")
        a("v_mov_b32 v41, v40\nv_mov_b32 v42, v40\nv_mov_b32 v43, v40\nv_rcp_f32 v36, v38\nv_mov_b32 v39, v38")
        for t in range(3):
            a.wait_lg(f"T{t}")
            a(f"v_mfma_f32_32x32x16_bf16 {v(48+16*t,16)}, {v(144+4*t,4)}, v[40:43], {v(48+16*t,16)}")
        after_bar()
        import struct, math
        A = -2 * math.sqrt(2 / math.pi) * math.log2(math.e); B = A * 0.044715
        fh = lambda x: "0x%08x" % struct.unpack("<I", struct.pack("<f", x))[0]
        a(f"v_mul_f32 v37, v36, v36\nv_mul_f32 v37, v37, v36\nv_mul_f32 v36, {fh(A)}, v36\nv_mul_f32 v37, {fh(B)}, v37")
        a(f"s_lshl_b32 s66, {MT}, 2\ns_add_u32 s66, s66, {WV}\ns_mul_i32 s66, s66, {2*48*1024}\ns_mul_i32 s67, {NT}, 3072\ns_add_u32 s66, s66, s67\ns_add_u32 s66, s66, {WS_H}")
        a(f"v_bfe_u32 v1, v0, 4, 1\nv_mul_u32_u24 v1, {48*1024}, v1\nv_and_b32 v2, 15, v0\nv_lshl_add_u32 v1, v2, 4, v1")
        a("v_lshrrev_b32 v2, 5, v0\nv_lshl_add_u32 v1, v2, 8, v1\nv_add_u32 v44, s66, v1")
        for t in range(3):
            for p in range(2):
                P = 48 + 16 * t + 8 * p
                T = 96 + 16 * ((2 * t + p) & 1); O = T + 8
                for i in range(4): a(f"v_pk_mul_f32 {v(T+2*i,2)}, {v(P+2*i,2)}, {v(P+2*i,2)}")
                for i in range(4): a(f"v_pk_fma_f32 {v(T+2*i,2)}, {v(T+2*i,2)}, v[36:37], v[36:37] op_sel:[0,1,0] op_sel_hi:[1,1,0]")
                for i in range(4): a(f"v_pk_mul_f32 {v(T+2*i,2)}, {v(T+2*i,2)}, {v(P+2*i,2)}")
                for i in range(8):
                    a(f"v_exp_f32 v{T+i}, v{T+i}"); ghook(2 * t + p, i)
                for i in range(4): a(f"v_pk_fma_f32 {v(T+2*i,2)}, {v(T+2*i,2)}, v[38:39], v[38:39]")
                for i in range(8):
                    a(f"v_rcp_f32 v{T+i}, v{T+i}"); ghook(2 * t + p, 8 + i)
                for i in range(4): a(f"v_pk_mul_f32 {v(T+2*i,2)}, {v(T+2*i,2)}, {v(P+2*i,2)}")
                for i in range(4): a(f"v_cvt_pk_bf16_f32 v{O+i}, v{T+2*i}, v{T+2*i+1}")
                a.vmem(f"buffer_store_dwordx4 {v(O,4)}, v44, {R(SWS)}, 0 offen offset:{1024*t+512*p} sc1")
        a.mark("hst")


    def cv_addr(self):
        a = self.a
        a("s_lshr_b32 s66, s2, 1\ns_mul_i32 s66, s66, 5\ns_and_b32 s67, s2, 1\ns_mul_i32 s67, s67, 3")
        a("s_add_u32 s81, s66, s67\ns_lshl_b32 s81, s81, 12\ns_add_u32 s82, s81, 4096\ns_add_u32 s83, s66, 2\ns_lshl_b32 s83, s83, 12")
        a(f"s_lshl_b32 s66, {WV}, 10\nv_lshlrev_b32 v{CV_TID}, 4, v0\nv_add_u32 v{CV_TID}, s66, v{CV_TID}")
    def cv_h_loads(self):
        a = self.a
        for z in range(3):
            a.vmem(f"buffer_load_dwordx4 {v(CV_H+8*z,4)}, v{CV_TID}, {R(SH)}, s{81+z} offen")
            a.vmem(f"buffer_load_dwordx2 {v(CV_H+8*z+4,2)}, v{CV_TID}, {R(SH)}, s{81+z} offen offset:16")
        a(f"v_bfe_u32 v1, v0, 3, 2\nv_min_u32 v1, 2, v1\nv_mov_b32 v2, s81\nv_mov_b32 v3, s82")
        a("v_cmp_eq_u32 vcc, 1, v1\nv_cndmask_b32 v2, v2, v3, vcc\nv_mov_b32 v3, s83\nv_cmp_eq_u32 vcc, 2, v1\nv_cndmask_b32 v2, v2, v3, vcc")
        a("v_lshrrev_b32 v3, 11, v2")
        a.vmem(f"buffer_load_dwordx2 {v(CV_SPV+2,2)}, v2, {R(SH)}, 0 offen")
        a.vmem(f"buffer_load_ushort v{CV_SPV}, v3, {R(SD)}, 0 offen", tag="cvh")
    def cv_kv_loads(self):
        a = self.a
        for z in range(3):
            a.vmem(f"buffer_load_dwordx4 {v(CV_KV+4*z,4)}, v{CV_TID}, {R(SWS)}, s{81+z} offen sc1")
        a.mark("cvkv")
    def cv_special(self):
        a = self.a
        S = CV_SPV
        L0, LJ = a.label("Lsp"), a.label("Lspj")
        a.wait_vm("cvh")
        a(f"s_cmp_eq_u32 {WV}, 0\ns_cbranch_scc1 {L0}")
        a(f"s_mul_i32 s66, {WV}, 4608\ns_add_u32 s66, s66, {L_KV - 4608 + 4096}")
        a(f"v_and_b32 v1, 31, v0\nv_lshlrev_b32 v1, 4, v1\nv_add_u32 v{CV_SPA}, s66, v1\nv_mov_b32 v{CV_FXA}, v{CV_SPA}")
        a(f"v_mov_b32 v{S+2}, 0\nv_mov_b32 v{S+3}, 0\nv_mov_b32 v{CV_FXV}, 0\ns_nop 1\ns_branch {LJ}")
        a(f"{L0}:")
        a(f"v_lshlrev_b32 v{S}, 16, v{S}\nv_lshlrev_b32 v1, 16, v{S+2}\nv_add_f32 v1, v1, v{S}\nv_cvt_pk_bf16_f32 v{CV_FXV}, v1, v1")
        a(f"v_mov_b32 v1, 0xffff\nv_bfi_b32 v{S+2}, v1, v{CV_FXV}, v{S+2}")
        a(f"v_lshlrev_b64 {v(S+2,2)}, 16, {v(S+2,2)}")
        a(f"v_bfe_u32 v1, v0, 1, 2\nv_lshlrev_b32 v2, 4, v1\nv_sub_u32 v2, 48, v2\nv_lshlrev_b64 {v(S+2,2)}, v2, {v(S+2,2)}")
        a(f"v_and_b32 v2, 1, v0\nv_cmp_eq_u32 vcc, 1, v2\nv_cndmask_b32 v{S+2}, 0, v{S+2}, vcc\nv_cndmask_b32 v{S+3}, 0, v{S+3}, vcc")
        a(f"v_bfe_u32 v3, v0, 3, 2\nv_min_u32 v3, 2, v3\nv_mul_u32_u24 v3, {4*4160}, v3\nv_add_u32 v{CV_FXA}, {L_HS+32}, v3")
        a(f"v_mul_u32_u24 v1, 4160, v1\nv_lshl_add_u32 v1, v2, 4, v1\nv_add_u32 v1, v1, v3\nv_add_u32 v{CV_SPA}, {L_HS}, v1")
        a(f"{LJ}:")
        a(f"v_mov_b32 v{S}, 0\nv_mov_b32 v{S+1}, 0")
    def cv_h_write(self, T=96):
        a = self.a
        for z in range(3):
            d = CV_H + 8 * z; t = T + 12 * z
            a.dsop(f"ds_write_b128 v{CV_TID}, {v(d,4)} offset:{L_HS+32+(4*z)*4160}")
            for i in range(4): a(f"v_alignbit_b32 v{t+i}, v{d+i+1}, v{d+i}, 16")
            a.dsop(f"ds_write_b128 v{CV_TID}, {v(t,4)} offset:{L_HS+32+(4*z+1)*4160}")
            for i in range(4): a(f"v_mov_b32 v{t+4+i}, v{d+i+1}")
            a.dsop(f"ds_write_b128 v{CV_TID}, {v(t+4,4)} offset:{L_HS+32+(4*z+2)*4160}")
            for i in range(4): a(f"v_alignbit_b32 v{t+8+i}, v{d+i+2}, v{d+i+1}, 16")
            a.dsop(f"ds_write_b128 v{CV_TID}, {v(t+8,4)} offset:{L_HS+32+(4*z+3)*4160}")
        a.dsop(f"ds_write_b128 v{CV_SPA}, {v(CV_SPV,4)}")
        a.dsop(f"ds_write_b16 v{CV_FXA}, v{CV_FXV}")
    def cv_kv_write(self):
        a = self.a
        a.wait_vm("cvkv")
        for z in range(3):
            a.dsop(f"ds_write_b128 v{CV_TID}, {v(CV_KV+4*z,4)} offset:{L_KV+z*4608}")
    def cv_addr2(self):
        a = self.a
        a("v_and_b32 v1, 15, v0\nv_lshrrev_b32 v2, 4, v0\nv_add_u32 v3, 1, v1\nv_and_b32 v4, 3, v3\nv_sub_u32 v3, v3, v4")
        a("v_mul_u32_u24 v4, 4160, v4\nv_lshl_add_u32 v4, v3, 1, v4\nv_lshl_add_u32 v4, v2, 4, v4")
        a("v_lshlrev_b32 v5, 4, v2\nv_lshlrev_b32 v3, 5, v1\nv_sub_u32 v5, v5, v3")
        a(f"s_lshr_b32 s66, {WV}, 1\ns_lshl_b32 s67, s66, 8")
        a(f"s_add_u32 s68, s67, {L_HS + 8*4160}\nv_add_u32 v6, s68, v4")
        a(f"s_add_u32 s68, s67, {L_KV + 2*4608 + 480}\nv_add_u32 v7, s68, v5")
        a(f"s_mul_i32 s68, s66, {4*4160}\ns_add_u32 s68, s68, {L_HS}\nv_add_u32 v4, s68, v4")
        a(f"s_mul_i32 s68, s66, 4608\ns_add_u32 s68, s68, {L_KV + 480}\nv_add_u32 v5, s68, v5")
        a(f"v_lshlrev_b32 v10, 4, v0\ns_lshl_b32 s68, {WV}, 13\ns_add_u32 s68, s68, {L_PX}\nv_add_u32 v8, s68, v10")
        a(f"s_xor_b32 s68, {WV}, 1\ns_lshl_b32 s68, s68, 13\ns_add_u32 s68, s68, {L_PX}\nv_add_u32 v9, s68, v10")
        a(f"s_lshl_b32 s68, s66, 11\ns_add_u32 s68, s68, {L_PX + 8192 + 4096}\nv_add_u32 v10, s68, v10")
        a("v_lshrrev_b32 v11, 5, v0\nv_lshlrev_b32 v11, 4, v11\nv_add_u32 v11, v11, v3\nv_and_b32 v2, 1, v2")
        a("s_and_b32 s68, s2, 1\ns_lshl_b32 s69, s68, 1\ns_sub_u32 s69, 3, s69\ns_lshl_b32 s69, s69, 9")
        a("v_mul_u32_u24 v12, s69, v2\nv_add_u32 v12, v12, v11")
        a(f"s_lshl2_add_u32 s68, s66, s68\ns_lshl_b32 s68, s68, 9\ns_add_u32 s68, s68, s83\ns_add_u32 s68, s68, {WS_YT}\nv_add_u32 v12, s68, v12")
        a("v_lshl_add_u32 v11, v2, 9, v11")
        a(f"s_lshl_b32 s68, {WV}, 11\ns_add_u32 s68, s68, s81\ns_add_u32 s68, s68, {WS_YT}\nv_add_u32 v11, s68, v11")

    def cv_reads(self, step):
        ab, bb, b, tiles, buf, D = step
        n = max(tiles) + 1
        A = 96 + 64 * buf; B = A + 32
        L = []
        for i in range(n):
            L.append(f"ds_read_b64 {v(A+4*i,2)}, v{ab} offset:{512*i+64*b}")
            L.append(f"ds_read_b64 {v(A+4*i+2,2)}, v{ab} offset:{512*i+64*b+8}")
            L.append(f"ds_read_b128 {v(B+4*i,4)}, v{bb} offset:{512*(7-i)+64*b}")
        return L
    def cv_steps(self, steps, first_issued=False, extra=None, hook=None):
        a = self.a
        extra = extra or {}
        hook = hook or (lambda si, mi: None)
        if not first_issued:
            for t in self.cv_reads(steps[0]): a.dsop(t)
        started = set()
        for si, st in enumerate(steps):
            if st is None: continue
            ab, bb, b, tiles, buf, D = st
            A = 96 + 64 * buf; B = A + 32
            nxt = self.cv_reads(steps[si + 1]) if si + 1 < len(steps) else []
            ex = list(extra.get(si, []))
            ms = [(aa, j) for aa in range(8) for j in tiles if j >= aa]
            if len(tiles) == 8: ms[-3], ms[-2] = ms[-2], ms[-3]
            a("s_waitcnt lgkmcnt(0)")
            per = 1 if len(tiles) == 8 else 2
            for mi, (aa, j) in enumerate(ms):
                d = D + 4 * tiles.index(j)
                c = v(d, 4) if d in started else "0"
                started.add(d)
                a(f"v_mfma_f32_16x16x32_bf16 {v(d,4)}, {v(A+4*aa,4)}, {v(B+4*(j-aa),4)}, {c}")
                k = 0
                while nxt and k < per:
                    a.dsop(nxt.pop(0)); k += 1
                if not nxt and k == 0 and ex:
                    a.dsop(ex.pop(0))
                hook(si, mi)
            assert not nxt and not ex, (len(nxt), len(ex))

    def cv_fin(self, pairs):
        a = self.a
        for (X, Y, PXs, PYs, vo, off, tg) in pairs:
            a.wait_lg(tg)
            for D, Ps in ((X, PXs), (Y, PYs)):
                for Pp in Ps:
                    a(f"v_pk_add_f32 {v(D,2)}, {v(D,2)}, {v(Pp,2)}\nv_pk_add_f32 {v(D+2,2)}, {v(D+2,2)}, {v(Pp+2,2)}")
            O = PXs[0]
            a(f"v_cvt_pk_bf16_f32 v{O}, v{X}, v{X+1}\nv_cvt_pk_bf16_f32 v{O+2}, v{Y}, v{Y+1}")
            a(f"v_cvt_pk_bf16_f32 v{O+1}, v{X+2}, v{X+3}\nv_cvt_pk_bf16_f32 v{O+3}, v{Y+2}, v{Y+3}")
            a(f"v_permlane16_swap_b32 v{O}, v{O+2}\nv_permlane16_swap_b32 v{O+1}, v{O+3}")
            a.vmem(f"buffer_store_dwordx4 {v(O,4)}, v{vo}, {R(SWS)}, 0 offen offset:{off} sc1")

    def cv_main(self, hook=None):
        a = self.a
        DM, DC = 32, 64
        full = list(range(8))
        Lodd, Loo, Lj1, LJ = a.label("Lcvo"), a.label("Lcvoo"), a.label("Lcvj"), a.label("Lcvj")
        a("s_waitcnt lgkmcnt(0)\ns_barrier")
        a(f"s_bitcmp1_b32 {WV}, 0\ns_cbranch_scc1 {Lodd}")
        s0 = a.snap(); outs = []
        self.cv_steps([(4, 5, b, full, b & 1, DM) for b in range(5)], hook=hook and hook(0))
        for i in range(4): a.dsop(f"ds_write_b128 v8, {v(DM+16+4*i,4)} offset:{1024*i}")
        a("s_waitcnt lgkmcnt(0)\ns_barrier")
        for i in range(4): a.dsop(f"ds_read_b128 {v(96+4*i,4)}, v9 offset:{1024*i}", tag=f"px{i}")
        for i in range(4): a.dsop(f"ds_read_b128 {v(112+4*i,4)}, v10 offset:{1024*(i&1)+16384*(i>>1)}", tag=f"px{4+i}")
        self.cv_fin([(DM, DM+4, [96], [100], 11, 0, "px1"), (DM+8, DM+12, [104], [108], 11, 1024, "px3"), (112, 116, [120], [124], 12, 0, "px7")])
        a(f"s_nop 1\ns_branch {LJ}")
        outs.append(a.snap()); a.restore(s0)
        a(f"{Lodd}:")
        a(f"s_bitcmp1_b32 s2, 0\ns_cbranch_scc1 {Loo}")
        o2 = []
        for par, tiles in ((0, [0, 3, 4, 7]), (1, [1, 2, 5, 6])):
            if par: a(f"{Loo}:")
            st = [(4, 5, b, full, (b - 5) & 1, DM) for b in (5, 6, 7)] + [(6, 7, b, tiles, (b + 1) & 1, DC) for b in range(4)]
            ex = {3: [f"ds_write_b128 v8, {v(DM+4*i,4)} offset:{1024*i}" for i in range(4)]}
            self.cv_steps(st, extra=ex, hook=hook and hook(1))
            for i in range(4): a.dsop(f"ds_write_b128 v8, {v(DC+4*i,4)} offset:{4096+1024*i}")
            if not par: a(f"s_branch {Lj1}")
            o2.append(a.snap()); a.restore(s0)
        a(f"{Lj1}:")
        a.merge(o2)
        a("s_waitcnt lgkmcnt(0)\ns_barrier")
        for i in range(4): a.dsop(f"ds_read_b128 {v(96+4*i,4)}, v9 offset:{1024*i}", tag=f"px{i}")
        self.cv_fin([(DM+16, DM+20, [96], [100], 11, 0, "px1"), (DM+24, DM+28, [104], [108], 11, 1024, "px3")])
        outs.append(a.snap())
        a(f"{LJ}:")
        a.merge(outs)
        a.mark("yst")

    def conv_all(self):
        a = self.a
        self.cv_addr(); a("s_waitcnt lgkmcnt(0)")
        self.cv_h_loads(); self.cv_kv_loads(); self.cv_addr2(); self.cv_special(); self.cv_h_write(); self.cv_kv_write()
        self.cv_main()

    def g2_w2f_addr(self, vr):
        a = self.a
        a(f"s_mul_i32 s66, {NT2}, {48*5120}\ns_mul_i32 s67, {WV}, {12*5120}\ns_add_u32 s66, s66, s67\ns_add_u32 s66, s66, {WS_W2F}")
        a(f"v_lshlrev_b32 v{vr}, 4, v0\nv_add_u32 v{vr}, s66, v{vr}")
    def g2_w2f_list(self, vr):
        L = []
        for i in range(60):
            if i % 4 == 0: L.append((f"s_movk_i32 s84, {i*1024}" if i * 1024 < 32768 else f"s_mov_b32 s84, {i*1024}", 0))
            L.append((f"buffer_load_dwordx4 {ar(4*i,4)}, v{vr}, {R(SWS)}, s84 offen offset:{(i%4)*1024} sc1", 1))
        return L
    def g2_addr0(self):
        a = self.a
        a(f"s_mul_i32 s66, {MT2}, {4*49152}\ns_mul_i32 s67, {WV}, 12288\ns_add_u32 s66, s66, s67\ns_add_u32 s66, s66, {WS_H}")
        a("v_lshlrev_b32 v14, 4, v0\nv_add_u32 v14, s66, v14")
        for i in range(4):
            a(f"s_add_u32 s66, {WV}, {i+1}\ns_and_b32 s66, s66, 3\ns_mul_i32 s{85+i}, s66, 49152")
    def g2_addr(self):
        a = self.a
        a("v_lshlrev_b32 v1, 4, v0")
        for i in range(4):
            a(f"s_add_u32 s66, {WV}, {i+1}\ns_and_b32 s66, s66, 3\ns_mul_i32 s66, s66, 15360")
            a(f"s_add_u32 s66, s66, {L_PT + (2-i)*5120 if i < 3 else L_PT}\nv_add_u32 v{5+i}, s66, v1")
        a("v_lshrrev_b32 v1, 4, v0\nv_mul_u32_u24 v12, 40, v1\nv_mul_u32_u24 v1, 20, v1\nv_bfe_u32 v2, v0, 2, 2\nv_add_u32 v1, v1, v2")
        a(f"v_and_b32 v2, 6, v1\nv_bfe_u32 v3, v0, 1, 1\ns_lshl_b32 s66, {WV}, 1\nv_or_b32 v3, s66, v3\nv_xor_b32 v2, v2, v3")
        a(f"v_lshlrev_b32 v1, 7, v1\nv_lshl_add_u32 v1, v2, 4, v1\nv_and_b32 v2, 1, v0\nv_lshl_add_u32 v1, v2, 3, v1\nv_add_u32 v9, {L_Y}, v1\nv_xor_b32 v4, 64, v9")
        a(f"s_mul_i32 s66, {NT2}, 80\ns_mul_i32 s67, {WV}, 24\ns_add_u32 s66, s66, s67\ns_lshl_b32 s66, s66, 12\ns_lshl_b32 s67, {MT2}, 7\ns_add_u32 s66, s66, s67\ns_add_u32 s66, s66, {WS_YT}")
        a("v_lshrrev_b32 v1, 3, v0\nv_and_b32 v2, 6, v1\nv_and_b32 v3, 7, v0\nv_xor_b32 v2, v2, v3\nv_lshlrev_b32 v1, 12, v1\nv_lshl_add_u32 v1, v2, 4, v1\nv_add_u32 v10, s66, v1")
        a(f"s_lshl2_add_u32 s66, {MT2}, {WV}\ns_lshl_b32 s66, s66, 4\nv_and_b32 v1, 15, v0\nv_add_u32 v1, s66, v1")
        a(f"s_mul_i32 s67, {NT2}, 160\nv_add_u32 v12, s67, v12\nv_mul_u32_u24 v11, 1280, v1\nv_add_u32 v11, v11, v12")
        a(f"v_lshlrev_b32 v13, 3, v1\nv_add_u32 v13, {WS_ST+4}, v13")
    def g2_h_list(self, i):
        L = []
        for k in range(12):
            if k % 4 == 0: L.append((f"s_add_u32 s89, s{85+i}, {k*1024}", 0))
            L.append((f"buffer_load_dwordx4 {v(HB(i)+4*k,4)}, v14, {R(SWS)}, s89 offen offset:{(k%4)*1024} sc1", 1, f"h{i}_{k}"))
        return L
    def g2_misc_list(self):
        Q, B2 = G2Q, G2B2
        L = [(f"buffer_load_dwordx4 {v(Q,4)}, v11, {R(SQ)}, 0 offen", 1), (f"buffer_load_dwordx4 {v(Q+4,4)}, v11, {R(SQ)}, 0 offen offset:16", 1),
             (f"buffer_load_dwordx2 {v(Q+8,2)}, v11, {R(SQ)}, 0 offen offset:32", 1),
             (f"buffer_load_dwordx4 {v(B2,4)}, v12, {R(SB2)}, 0 offen", 1), (f"buffer_load_dwordx4 {v(B2+4,4)}, v12, {R(SB2)}, 0 offen offset:16", 1),
             (f"buffer_load_dwordx2 {v(B2+8,2)}, v12, {R(SB2)}, 0 offen offset:32", 1),
             (f"buffer_load_dword v15, v13, {R(SWS)}, 0 offen sc1", 1, "misc")]
        return L
    def g2_y_list(self):
        L = [(f"s_mul_i32 s66, {WV}, 3072", 0), (f"s_add_u32 m0, s66, {L_Y}", 0)]
        L.append((f"buffer_load_dwordx4 v10, {R(SWS)}, 0 offen sc1 lds", 1))
        L += [(f"s_add_u32 m0, m0, 1024", 0), ("s_mov_b32 s66, 32768", 0), (f"buffer_load_dwordx4 v10, {R(SWS)}, s66 offen sc1 lds", 1)]
        L += [(f"s_add_u32 m0, m0, 1024", 0), ("s_mov_b32 s66, 65536", 0), (f"buffer_load_dwordx4 v10, {R(SWS)}, s66 offen sc1 lds", 1, "y")]
        return L
    def emit(self, L):
        for e in L:
            if e[1]: self.a.vmem(e[0], tag=e[2] if len(e) > 2 else None)
            else: self.a(e[0])
    def g2_main(self, wtags=None, ypoll=None, ypos=(2, 30)):
        a = self.a
        Q, B2, YR, PR = G2Q, G2B2, 232, 148
        side = {}
        def at(st, mi, f): side.setdefault((st, mi), []).append(f)
        for i in range(3):
            D = 24 + 20 * (i & 1)
            for j in range(5):
                at(i + 1, 4 + j, lambda i=i, j=j, D=D: a.dsop(f"ds_write_b128 v{5+i}, {v(D+4*j,4)} offset:{1024*j}"))
        ml = self.g2_misc_list()
        for n, e in enumerate(ml): at(1, 10 + 2 * n, lambda e=e: self.emit([e]))
        if ypoll: ypoll(at)
        at(ypos[0], ypos[1], lambda: self.emit(self.g2_y_list()))
        def bar():
            a.wait_vm("y", lg=0); a("s_barrier")
        at(3, 12, bar)
        k = 13
        for o in range(3):
            for j in range(5):
                at(3, k, lambda o=o, j=j: a.dsop(f"ds_read_b128 {v(PR+20*o+4*j,4)}, v8 offset:{5120*o+1024*j}", tag=f"pr{o}")); k += 1
        for j in range(5):
            at(3, k, lambda j=j: a.dsop(f"ds_read_b64_tr_b16 {v(YR+2*j,2)}, v{4 if j&1 else 9} offset:{512*j}", tag="yr")); k += 1
        U = 116
        def unpack_b2(i):
            a(f"v_lshlrev_b32 v{U+2*i}, 16, v{B2+i}\nv_and_b32 v{U+2*i+1}, 0xffff0000, v{B2+i}")
        for i in range(10): at(3, 1 + i, (lambda i=i: (a.wait_vm("misc") if i == 0 else None, unpack_b2(i))))
        def addp(o, i):
            if i == 0: a.wait_lg(f"pr{o}")
            a(f"v_pk_add_f32 {v(U+4*i,2)}, {v(U+4*i,2)}, {v(PR+20*o+4*i,2)}\nv_pk_add_f32 {v(U+4*i+2,2)}, {v(U+4*i+2,2)}, {v(PR+20*o+4*i+2,2)}")
        k = 30
        for o in range(3):
            for i in range(5): at(3, k, lambda o=o, i=i: addp(o, i)); k += 1
        def aterm(i):
            if i == 0:
                a.wait_lg("yr")
                a("v_lshlrev_b32 v16, 16, v15\nv_and_b32 v18, 0xffff0000, v15\nv_mov_b32 v17, v16\nv_mov_b32 v19, v18")
            T = PR + 2 * i; X = PR + 20 + 2 * i
            a(f"v_lshlrev_b32 v{T}, 16, v{Q+i}\nv_and_b32 v{T+1}, 0xffff0000, v{Q+i}")
            a(f"v_lshlrev_b32 v{X}, 16, v{YR+i}\nv_and_b32 v{X+1}, 0xffff0000, v{YR+i}")
        def aterm2(i):
            T = PR + 2 * i; X = PR + 20 + 2 * i
            a(f"v_pk_mul_f32 {v(T,2)}, {v(T,2)}, {v(X,2)}\nv_pk_mul_f32 {v(U+2*i,2)}, {v(U+2*i,2)}, v[18:19]")
            a(f"v_pk_fma_f32 {v(U+2*i,2)}, {v(T,2)}, v[16:17], {v(U+2*i,2)}")
        for i in range(10):
            at(3, 45 + i, lambda i=i: aterm(i))
            at(3, 46 + i if i < 9 else 55, lambda i=i: aterm2(i))
        for st in range(4):
            D = 24 + 20 * (st & 1)
            for kk in range(12):
                if st == 0 and wtags: a.wait_vm(wtags(kk))
                a.wait_vm(f"h{st}_{kk}")
                for j in range(5):
                    c = v(D + 4 * j, 4) if kk else "0"
                    a(f"v_mfma_f32_16x16x32_bf16 {v(D+4*j,4)}, {ar((kk*5+j)*4,4)}, {v(HB(st)+4*kk,4)}, {c}")
                    for f in side.pop((st, kk * 5 + j), []): f()
        assert not side, side.keys()
        D = 44
        for i in range(10): a(f"v_pk_fma_f32 {v(U+2*i,2)}, {v(D+2*i,2)}, v[18:19], {v(U+2*i,2)}")
        for i in range(10):
            a(f"v_cvt_pk_bf16_f32 v{Q+i}, v{U+2*i}, v{U+2*i+1}")
            if i == 3: a.vmem(f"buffer_store_dwordx4 {v(Q,4)}, v11, {R(SO)}, 0 offen")
            if i == 7: a.vmem(f"buffer_store_dwordx4 {v(Q+4,4)}, v11, {R(SO)}, 0 offen offset:16")
        a.vmem(f"buffer_store_dwordx2 {v(Q+8,2)}, v11, {R(SO)}, 0 offen offset:32")
    def g2_all(self):
        a = self.a
        self.g2_w2f_addr(20); self.g2_addr0(); self.g2_addr(); a("s_waitcnt lgkmcnt(0)")
        W = self.g2_w2f_list(20); H = self.g2_h_list(0)
        nw = 0
        for kk in range(12):
            while nw < 5 * kk + 5:
                e = W.pop(0); self.emit([e]); nw += e[1]
            while True:
                e = H.pop(0); self.emit([e])
                if e[1]: break
        for i in range(1, 4): self.emit(self.g2_h_list(i))
        self.g2_main()

def kern(name, g, vg=256, ag=256):
    return dict(name=name, grid=(256, 1, 1), block=256, lds=163840, body=g.a.text(), vgpr=vg, agpr=ag, sgpr=100)

def build_split(which):
    ks = []
    if "p" in which:
        g = Gen("p", False); g.prologue(); g.phase_p(); g.epilogue(); ks.append(kern("p_kernel", g))
    if "g1" in which:
        g = Gen("g1", False); g.prologue(); g.g1_addr(); g.a("s_waitcnt lgkmcnt(0)")
        g.g1_b1()
        for n in range(5): g.g1_dma(n)
        g.g1_stats_load()
        g.g1_addr2(); g.g1_b1_store(); g.g1_loop(); g.g1_finish(); g.epilogue(); ks.append(kern("g1_kernel", g))
    if "cv" in which:
        g = Gen("cv", False); g.prologue(); g.conv_all(); g.epilogue(); ks.append(kern("cv_kernel", g))
    if "g2" in which:
        g = Gen("g2", False); g.prologue(); g.g2_all(); g.epilogue(); ks.append(kern("g2_kernel", g))
    return build_file(ks)

if __name__ == "__main__":
    out = sys.argv[1]; which = sys.argv[2].split(",")
    open(out, "w").write(build_split(which))
```

```python
import sys; sys.path.insert(0, "gen")
import k as K0
from k import *

F1 = WS_FL; F2 = WS_FL + 1024; F3 = WS_FL + 1024 + 4096
WS_PROF = 0xE18000
SPIN = 20000

class Fused(Gen):
    def __init__(self, name, prof=False, **opt):
        super().__init__(name, True)
        self.prof = prof; self.names = []
        self.o = dict(pub1=2, poll1=5, chk1=7, w2f_gelu=4, pub2=(1, 20), poll2=(2, 10), chk2=(3, 10))
        self.o.update(opt)
    def stamp(self, name):
        if not self.prof: return
        a = self.a
        if name not in self.names: self.names.append(name)
        i = self.names.index(name)
        assert i < 25
        a("s_memtime s[90:91]\ns_waitcnt lgkmcnt(0)")
        if i == 0: a("s_mov_b32 s101, s100")
        if i < 9: a(f"s_mov_b32 s{92+i}, s90")
        else: a(f"v_accvgpr_write_b32 a{240+i-9}, s90")
    def capture(self, fn):
        a = self.a; n = len(a.lines); fn(); L = a.lines[n:]; del a.lines[n:]
        return [l.strip() for l in L]
    def one_lane_store(self, vdata, soff):
        a = self.a
        a("s_mov_b64 exec, 1")
        a.vmem(f"buffer_store_dword v{vdata}, off, {R(SWS)}, {soff} sc1")
        a("s_mov_b64 exec, -1")
    def check(self, tag, load, regs):
        a = self.a
        Lc, Lok = a.label("Lchk"), a.label("Lok")
        a(f"s_movk_i32 s68, {SPIN}")
        a.wait_vm(tag)
        a(f"{Lc}:")
        a(f"v_cmp_ne_u32 vcc, {NONCE}, v{regs[0]}")
        for r in regs[1:]:
            a(f"v_cmp_ne_u32 s[66:67], {NONCE}, v{r}\ns_or_b64 vcc, vcc, s[66:67]")
        a(f"s_nop 1\ns_cbranch_vccz {Lok}")
        a(f"s_sub_u32 s68, s68, 1\ns_cbranch_scc1 {Lok}")
        a("s_sleep 1")
        a(load)
        a(f"s_waitcnt vmcnt(0)\ns_branch {Lc}")
        a(f"{Lok}:")
    def build(self):
        a = self.a; o = self.o
        if self.prof: a("s_memrealtime s[100:101]")
        self.prologue()
        self.stamp("pro")
        Ln = a.label("Lnp")
        a(f"s_or_b32 s66, s2, {WV}\ns_cmp_lg_u32 s66, 0\ns_cbranch_scc1 {Ln}")
        a("s_memrealtime s[66:67]\ns_waitcnt lgkmcnt(0)\ns_or_b32 s66, s66, 1\nv_mov_b32 v1, s66\ns_mov_b64 exec, 1")
        a(f"buffer_store_dword v1, off, {R(SDBG)}, 0 sc1\ns_mov_b64 exec, -1\ns_nop 1")
        a(f"{Ln}:")
        self.g1_addr(); self.cv_addr()
        nload = f"buffer_load_dword v164, off, {R(SDBG)}, 0 sc1"
        def pre():
            self.g1_b1()
            self.stamp("Pld")
            for n in range(5): self.g1_dma(n)
            self.stamp("dma5")
        def post():
            a.vmem(nload, tag="nonce")
        self.phase_p(pre=pre, post=post)
        self.stamp("P")
        self.g1_addr2(); self.g1_b1_store()
        a(f"v_lshlrev_b32 v165, 4, v0\ns_mov_b32 s84, {F1}")
        p1load = f"buffer_load_dwordx4 v[160:163], v165, {R(SWS)}, s84 offen sc1"
        def hook(q, pos):
            n = q >> 2
            if pos == "prebar" and n == o["pub1"]:
                Lc, Lok = a.label("Lnc"), a.label("Lnok")
                self.stamp("G1a")
                a(f"s_movk_i32 s68, {SPIN}")
                a.wait_vm("nonce")
                a(f"{Lc}:\nv_readfirstlane_b32 {NONCE}, v164\ns_cmp_lg_u32 {NONCE}, 0\ns_cbranch_scc1 {Lok}")
                a(f"s_sub_u32 s68, s68, 1\ns_cbranch_scc1 {Lok}\ns_sleep 1\n{nload}\ns_waitcnt vmcnt(0)\ns_branch {Lc}\n{Lok}:")
            if pos == "bar" and n == o["pub1"]:
                self.stamp("pub1")
                Ls = a.label("Lsk")
                a(f"s_cmp_lg_u32 {WV}, 0\ns_cbranch_scc1 {Ls}")
                s0 = a.snap()
                a(f"s_lshl2_add_u32 s66, s2, {F1}")
                self.one_lane_store(164, "s66")
                a(f"{Ls}:")
                a.restore(s0)
            if pos == "bar" and n == o["poll1"]:
                a.vmem(p1load, tag="poll1")
            if pos == "mid" and q == 4 * o["poll1"] + 3:
                self.cv_h_loads()
            if pos == "bar" and n == o["chk1"]:
                self.stamp("G1b")
                self.check("poll1", p1load, [160, 161, 162, 163])
                self.stamp("chk1")
                self.g1_stats_load()
                self.cv_kv_loads()
            if pos == "mid" and q == 4 * o["chk1"] + 3:
                self.cv_special()
        self.g1_loop(hook)
        self.stamp("G1")
        W = []
        def after_bar():
            self.g2_w2f_addr(13); self.g2_addr0()
            a("v_mov_b32 v15, v164")
            W.extend(self.g2_w2f_list(13))
            self.cv_h_write(T=168); self.cv_kv_write(); self.cv_addr2(); self.stamp("fin0")
        def popw(k):
            while k and W:
                e = W.pop(0); self.emit([e]); k -= e[1]
        def ghook(g, pos):
            per = o["w2f_gelu"]
            if pos % (16 // per) == 0 and pos // (16 // per) < per: popw(1)
        self.g1_finish(after_bar=after_bar, ghook=ghook)
        self.stamp("gelu")
        a(f"s_lshl_b32 s74, {MT}, 8\ns_lshl3_add_u32 s74, {NT}, s74\ns_lshr_b32 s66, {WV}, 1\ns_lshl_b32 s66, s66, 7\ns_add_u32 s74, s74, s66")
        a(f"s_and_b32 s66, {WV}, 1\ns_lshl2_add_u32 s74, s66, s74\ns_add_u32 s74, s74, {F2}")
        a(f"s_lshl_b32 s75, {MT2}, 7\ns_add_u32 s75, s75, {F2}\nv_and_b32 v16, 31, v0\nv_lshlrev_b32 v16, 2, v16")
        p2load = f"buffer_load_dword v17, v16, {R(SWS)}, s75 offen sc1"
        Wsave = list(W)
        def cvhook(odd):
            W[:] = list(Wsave)
            H = self.g2_h_list(0) + self.g2_h_list(1)
            cnt = [0]
            last = 6 if odd else 4
            def h(si, mi):
                c = cnt[0]; cnt[0] += 1
                if c % 2 == 1: popw(1)
                if c == 36 * o["pub2"][0] + o["pub2"][1]:
                    self.stamp("cva"); a.wait_vm("hst"); self.one_lane_store(15, "s74"); self.stamp("pub2")
                if c == 36 * o["poll2"][0] + o["poll2"][1]:
                    a.vmem(p2load, tag="poll2")
                if c == 36 * o["chk2"][0] + o["chk2"][1]:
                    assert not W
                    self.stamp("cvb"); self.check("poll2", p2load, [17]); self.stamp("chk2")
                if si == last:
                    k = 2 if odd else 1
                    while k and H:
                        e = H.pop(0); self.emit([e]); k -= e[1]
                if c == 179: assert not H
            return h
        self.cv_main(hook=cvhook)
        self.emit(self.g2_h_list(2)); self.emit(self.g2_h_list(3))
        self.stamp("conv")
        AD = self.capture(self.g2_addr)
        AD += [f"s_lshl2_add_u32 s74, s2, {WV}", f"s_lshl2_add_u32 s74, s74, {F3}", f"s_lshl_b32 s75, {NT2}, 9", f"s_add_u32 s75, s75, {F3}",
               "v_lshlrev_b32 v20, 3, v0", "v_mov_b32 v21, v15"]
        p3load = f"buffer_load_dwordx2 v[22:23], v20, {R(SWS)}, s75 offen sc1"
        def ypoll(at):
            for i in range(0, len(AD), 2):
                at(0, 2 + i // 2, lambda i=i: a("\n".join(AD[i:i + 2])))
            assert 2 + len(AD) // 2 < 55
            def pub():
                a.wait_vm("yst"); self.one_lane_store(21, "s74")
            at(0, 58, pub)
            at(1, 45, lambda: a.vmem(p3load, tag="poll3"))
            at(2, 29, lambda: self.check("poll3", p3load, [22, 23]))
            if self.prof:
                at(0, 57, lambda: self.stamp("g2s0")); at(0, 59, lambda: self.stamp("pub3")); at(1, 59, lambda: self.stamp("g2s1")); at(2, 28, lambda: self.stamp("g2s2a")); at(2, 31, lambda: self.stamp("chk3")); at(3, 11, lambda: self.stamp("g2s3a")); at(3, 13, lambda: self.stamp("ybar"))
        self.g2_main(ypoll=ypoll)
        self.stamp("g2end")
        if self.prof:
            a("s_waitcnt vmcnt(0)")
            self.stamp("drain")
            a(f"s_lshl2_add_u32 s66, s2, {WV}\ns_lshl_b32 s66, s66, 7\ns_add_u32 s66, s66, {WS_SIZE}\ns_mov_b32 s{SWS+2}, {WS_SIZE+131072}")
            a("s_memrealtime s[90:91]\ns_waitcnt lgkmcnt(0)")
            a("v_mov_b32 v1, 0")
            for i in range(len(self.names)):
                if i < 9: a(f"v_writelane_b32 v1, s{92+i}, {i}")
                else: a(f"v_accvgpr_read_b32 v2, a{240+i-9}\ns_nop 1\nv_readfirstlane_b32 s67, v2\ns_nop 4\nv_writelane_b32 v1, s67, {i}")
            a("v_writelane_b32 v1, s90, 29\ns_getreg_b32 s67, hwreg(HW_REG_XCC_ID)\nv_writelane_b32 v1, s67, 30\nv_writelane_b32 v1, s101, 31")
            a("v_lshlrev_b32 v2, 2, v0\ns_mov_b64 exec, 0xffffffff")
            a(f"buffer_store_dword v1, v2, {R(SWS)}, s66 offen")
            a.lines.insert(0, "    ; stamps: " + ",".join(self.names))
        self.epilogue()
        d = kern(KN + "_kernel", self); d["sgpr"] = 102
        return build_file([d])

if __name__ == "__main__":
    out = sys.argv[1]
    opt = {}
    prof = False
    for x in sys.argv[2:]:
        if x == "prof": prof = True
        else:
            k_, v_ = x.split("="); opt[k_] = eval(v_)
    open(out, "w").write(Fused("f", prof, **opt).build())
```

```python
import sys; sys.path.insert(0, "gen")
import struct, math
import k as K0
from k import *

F1 = WS_FL; F2 = WS_FL + 1024; F3 = WS_FL + 1024 + 4096
SPIN = 20000
L_X = 0; L_W1 = 65536; L_K = 114688; L_V = 126976; L_SP = 139264; L_T = 149504; L_GW = 153600
K0.L_SP = L_SP; K0.L_T = L_T
CH = "s3"
def HR(st, kk):
    if st == 0: return 224 + 4 * kk if kk < 8 else 80 + 4 * (kk - 8)
    if st == 1: return 176 + 4 * kk
    if st == 2: return 160 + 4 * kk if kk < 4 else 128 + 4 * (kk - 4)
    return 64 + 4 * kk if kk < 4 else 96 + 4 * (kk - 4)
PO = 8

class G(Gen):
    def __init__(self, name, prof=False, **opt):
        super().__init__(name, True)
        self.prof = prof; self.names = []
        self.o = dict(map="4x2", PD=4, rot=1, rot2=1, mkv="nt", mw2="nt", mssm="nt", mx="", mw1="", mh="sc1", mwf="sc1",
                      pub1=1, poll1=4, chk1=5, wq=1, wg=5, wc=5, pub2=40, poll2=70, chk2=100, hc=4, pdma=8, hg=4)
        self.o.update(opt)
    def stamp(self, name):
        if not self.prof: return
        a = self.a
        if name not in self.names: self.names.append(name)
        i = self.names.index(name)
        assert i < 25
        a("s_memtime s[90:91]\ns_waitcnt lgkmcnt(0)")
        if i == 0: a("s_mov_b32 s101, s100")
        if i < 9: a(f"s_mov_b32 s{92+i}, s90")
        else: a(f"v_accvgpr_write_b32 a{240+i-9}, s90")
    def capture(self, fn):
        a = self.a; n = len(a.lines); fn(); L = a.lines[n:]; del a.lines[n:]
        return [l.strip() for l in L]
    def one_lane_store(self, vdata, soff):
        a = self.a
        a("s_mov_b64 exec, 1")
        a.vmem(f"buffer_store_dword v{vdata}, off, {R(SWS)}, {soff} sc1")
        a("s_mov_b64 exec, -1")
    def check(self, tag, load, regs):
        a = self.a
        Lc, Lok = a.label("Lchk"), a.label("Lok")
        a(f"s_movk_i32 s68, {SPIN}")
        a.wait_vm(tag)
        a(f"{Lc}:")
        a(f"v_cmp_ne_u32 vcc, {NONCE}, v{regs[0]}")
        for r in regs[1:]:
            a(f"v_cmp_ne_u32 s[66:67], {NONCE}, v{r}\ns_or_b64 vcc, vcc, s[66:67]")
        a(f"s_nop 1\ns_cbranch_vccz {Lok}")
        a(f"s_sub_u32 s68, s68, 1\ns_cbranch_scc1 {Lok}")
        a("s_sleep 1")
        a(load)
        a(f"s_waitcnt vmcnt(0)\ns_branch {Lc}")
        a(f"{Lok}:")
    def pop(self, L, k):
        while k > 0 and L:
            e = L.pop(0); self.emit([e]); k -= e[1]

    def prologue(self):
        a = self.a
        a(f"s_cmp_ge_u32 s2, 256\ns_cbranch_scc1 {self.end}")
        T = ((SK, 8, 2621440), (SV, 16, 2621440), (SSH, 24, 5120), (SQ, 0, 2621440), (SW1, 56, 1966080), (SW2, 72, 1966080),
             (SWS, 112, WS_SIZE), (SGW, 88, 1280), (SB1, 64, 3072), (SH, 32, 2621440), (SD, 40, 1280),
             (SO, 96, 2621440), (SDBG, 104, 256), (SB2, 80, 1280))
        for s, off, nb in T: a(f"s_load_dwordx2 s[{s}:{s+1}], s[0:1], {off}")
        a("v_lshrrev_b32 v1, 6, v0\nv_and_b32 v0, 63, v0")
        a(f"v_readfirstlane_b32 {WV}, v1")
        for s, off, nb in T: a(f"s_mov_b32 s{s+2}, {nb}\ns_mov_b32 s{s+3}, 0x00020000")
        a("s_lshr_b32 s68, s2, 3")
        if self.o["map"] == "4x2":
            a("s_lshr_b32 s66, s2, 1\ns_and_b32 s66, s66, 3\ns_and_b32 s67, s2, 1")
            a(f"s_lshr_b32 s69, s68, 3\ns_lshl2_add_u32 {MT}, s66, s69")
            a(f"s_and_b32 s69, s68, 7\ns_lshl3_add_u32 {NT}, s67, s69")
            a(f"s_lshr_b32 s69, s68, 2\ns_lshl3_add_u32 {MT2}, s66, s69")
            a(f"s_and_b32 s69, s68, 3\ns_lshl2_add_u32 {NT2}, s67, s69")
            mul = 3
        else:
            a("s_and_b32 s66, s2, 7")
            a(f"s_lshr_b32 s69, s68, 4\ns_lshl1_add_u32 {MT}, s66, s69\ns_and_b32 {NT}, s68, 15")
            a(f"s_lshr_b32 s69, s68, 3\ns_lshl2_add_u32 {MT2}, s66, s69\ns_and_b32 {NT2}, s68, 7")
            mul = 5
        if self.o["rot"]:
            if mul == 3: a(f"s_mul_i32 s66, {MT}, 3\ns_add_u32 s66, s66, {NT}")
            else: a(f"s_mul_i32 s66, {MT}, 11\ns_lshr_b32 s66, s66, 1\ns_add_u32 s66, s66, {NT}")
            a(f"s_mul_i32 s67, s66, 6554\ns_lshr_b32 s67, s67, 16\ns_mul_i32 s67, s67, 10\ns_sub_u32 {CH}, s66, s67")
        else:
            a(f"s_mov_b32 {CH}, 0")

    def p_dma(self):
        a = self.a; m = self.o["mkv"]
        a(f"s_mul_i32 s66, {MT2}, 81920\ns_mul_i32 s67, {NT2}, 160\ns_add_u32 s66, s66, s67\ns_lshl_b32 s67, {WV}, 6")
        a("v_bfrev_b32 v46, 1")
        for j in range(3):
            a(f"v_add_u32 v1, s67, v0")
            if j: a(f"v_add_u32 v1, {256*j}, v1")
            a("v_mul_u32_u24 v2, 6394, v1\nv_lshrrev_b32 v2, 19, v2")
            a("v_mul_u32_u24 v3, 82, v2\nv_sub_u32 v3, v1, v3")
            a(f"v_mul_u32_u24 v{40+j}, 205, v3\nv_lshrrev_b32 v{40+j}, 11, v{40+j}")
            a(f"v_mul_u32_u24 v{40+j}, 1120, v{40+j}\nv_lshl_add_u32 v{40+j}, v3, 4, v{40+j}")
            a(f"v_mad_u32_u24 v{40+j}, v2, s70, v{40+j}\nv_add_u32 v{40+j}, s66, v{40+j}")
            a(f"v_cmp_gt_u32 vcc, 80, v3\nv_cndmask_b32 v{40+j}, v46, v{40+j}, vcc")
            a(f"v_subrev_u32 v{43+j}, 3840, v{40+j}")
            if j == 2:
                a("v_cmp_gt_u32 vcc, 686, v1\nv_cndmask_b32 v45, v46, v45, vcc\nv_cmp_gt_u32 vcc, 656, v1\nv_cndmask_b32 v42, v46, v42, vcc")
            if j == 0: a(f"s_lshl_b32 s68, {WV}, 10\ns_waitcnt lgkmcnt(0)")
            a(f"s_add_u32 m0, s68, {L_K + 4096*j}")
            a.vmem(f"buffer_load_dwordx4 v{43+j}, {R(SK)}, 0 offen {m} lds")
            a(f"s_add_u32 m0, s68, {L_V + 4096*j}")
            a.vmem(f"buffer_load_dwordx4 v{40+j}, {R(SV)}, 0 offen {m} lds")
        a.mark("pkv")
    def p_addr(self):
        a = self.a
        a("v_and_b32 v1, 7, v0\nv_lshrrev_b32 v2, 3, v0")
        a(f"s_lshl_b32 s67, {WV}, 5\ns_add_u32 s66, s67, {L_K}")
        a("v_mul_u32_u24 v36, 1312, v1\nv_lshl_add_u32 v36, v2, 2, v36\nv_add_u32 v36, s66, v36")
        a(f"s_mul_i32 s66, {NT2}, 640\ns_lshl_b32 s67, {WV}, 7\ns_add_u32 s66, s66, s67")
        a("v_lshlrev_b32 v38, 4, v2\nv_add_u32 v38, s66, v38")
        a(f"s_mul_i32 s66, {NT2}, {80*4096}\ns_lshl_b32 s67, {WV}, 16\ns_add_u32 s66, s66, s67\ns_lshl_b32 s67, {MT2}, 7\ns_sub_u32 s66, s66, s67\ns_add_u32 s66, s66, {WS_KVR+4080}")
        a("v_lshlrev_b32 v39, 13, v2\nv_lshlrev_b32 v1, 4, v1\nv_sub_u32 v39, v39, v1\nv_add_u32 v39, s66, v39")
        a("s_movk_i32 s71, 4096\ns_mov_b32 s72, 262144\ns_mov_b32 s73, 266240")
    def p_item_reads(self, Rb, second, tag):
        a = self.a
        o = 128 if second else 0
        for i in range(11):
            a.dsop(f"ds_read_b32 v{Rb+i}, v36 offset:{(i>>3)*1312+(i&7)*160+o}", tag=tag + "k" if i == 10 else None)
        for i in range(8):
            a.dsop(f"ds_read_b32 v{Rb+11+i}, v36 offset:{L_V-L_K+i*160+o}", tag=tag if i == 7 else None)
    def p_item_compute(self, Rb, Ob, second, tag, D):
        a = self.a
        KP, SP, AC = 96, 118, 126
        cnt = [0]
        def e(s):
            for l in s.split("\n"):
                a(l); cnt[0] += 1
                if cnt[0] % self.o["pdma"] == 0: self.pop(D, 1)
        for j in range(4):
            for c in range(2):
                src = Rb + 20 + 2 * c + (j >> 1)
                if j & 1: e(f"v_and_b32 v{SP+2*j+c}, 0xffff0000, v{src}")
                else: e(f"v_lshlrev_b32 v{SP+2*j+c}, 16, v{src}")
        a.wait_lg(tag + "k")
        for i in range(11):
            e(f"v_lshlrev_b32 v{KP+2*i}, 16, v{Rb+i}\nv_and_b32 v{KP+2*i+1}, 0xffff0000, v{Rb+i}")
        for j in (3, 2, 1, 0):
            for i in range(8):
                kp = KP + 2 * (i + 3 - j)
                if j == 3: e(f"v_pk_mul_f32 {v(AC+2*i,2)}, {v(kp,2)}, {v(SP+2*j,2)}")
                else: e(f"v_pk_fma_f32 {v(AC+2*i,2)}, {v(kp,2)}, {v(SP+2*j,2)}, {v(AC+2*i,2)}")
        a.wait_lg(tag)
        for i in range(8):
            e(f"v_lshlrev_b32 v{KP+2*i}, 16, v{Rb+11+i}\nv_and_b32 v{KP+2*i+1}, 0xffff0000, v{Rb+11+i}")
        for i in range(8):
            e(f"v_pk_mul_f32 {v(AC+2*i,2)}, {v(AC+2*i,2)}, {v(KP+2*i,2)}")
        for c in range(2):
            for m in range(4):
                a(f"v_cvt_pk_bf16_f32 v{Ob+4*c+m}, v{AC+2*(7-2*m)+c}, v{AC+2*(6-2*m)+c}")
            so = (("0", "s71"), ("s72", "s73"))[second][c]
            a.vmem(f"buffer_store_dwordx4 {v(Ob+4*c,4)}, v39, {R(SWS)}, {so} offen sc1")
    def p_w2f_loads(self):
        a = self.a
        a(f"s_lshr_b32 s66, s2, 2\ns_mul_i32 s66, s66, 40960\ns_and_b32 s67, s2, 3\ns_mul_i32 s67, s67, 320\ns_add_u32 s66, s66, s67")
        a(f"s_and_b32 s67, {WV}, 1\ns_mul_i32 s68, s67, 20480\ns_add_u32 s66, s66, s68\ns_mul_i32 s67, s67, 5120\ns_add_u32 s67, s67, {L_SP}")
        for n in range(5):
            a(f"v_add_u32 v1, {64*n}, v0\nv_mul_u32_u24 v2, 3277, v1\nv_lshrrev_b32 v2, 16, v2")
            a(f"v_mul_u32_u24 v2, 960, v2\nv_lshl_add_u32 v{208+n}, v1, 4, v2\ns_add_u32 m0, s67, {1024*n}")
            a.vmem(f"buffer_load_dwordx4 v{208+n}, {R(SW2)}, s66 offen {self.o['mw2']} lds")
    def p_w2f_compute(self):
        a = self.a
        a("v_lshrrev_b32 v1, 5, v0\nv_bfe_u32 v2, v0, 2, 3\nv_lshl_add_u32 v1, v1, 4, v2")
        a("v_mul_u32_u24 v1, 320, v1\nv_and_b32 v2, 3, v0\nv_mul_u32_u24 v2, 40, v2")
        a(f"s_and_b32 s68, {WV}, 1\ns_mul_i32 s66, s68, 160\ns_add_u32 s66, s66, {L_SP}\nv_add3_u32 v1, v1, v2, s66")
        for j in range(5):
            d = 208 + j * 4
            a.dsop(f"ds_read_b64_tr_b16 {v(d,2)}, v1 offset:{8*j}")
            a.dsop(f"ds_read_b64_tr_b16 {v(d+2,2)}, v1 offset:{8*j+2560}", tag=f"w2f{j}")
        a(f"s_and_b32 s66, s2, 3\ns_lshl1_add_u32 s66, s66, s68\ns_mul_i32 s66, s66, {48*5120}\ns_lshr_b32 s67, s2, 2\ns_mul_i32 s67, s67, 5120\ns_add_u32 s66, s66, s67\ns_add_u32 s66, s66, {WS_W2F}")
        a("v_lshlrev_b32 v2, 4, v0\ns_add_u32 s67, s66, 4096")
        for j in range(5):
            d = 208 + j * 4
            a.wait_lg(f"w2f{j}")
            a.vmem(f"buffer_store_dwordx4 {v(d,4)}, v2, {R(SWS)}, {'s67' if j == 4 else 's66'} offen offset:{(j&3)*1024} sc1")
    def gw_dma(self):
        a = self.a
        a(f"s_lshl_b32 s66, {CH}, 7\nv_lshlrev_b32 v1, 4, v0\nv_add_u32 v1, s66, v1\nv_add_u32 v2, 1024, v1")
        for r in (1, 2):
            a(f"v_subrev_u32 v3, 1280, v{r}\nv_min_u32 v{r}, v{r}, v3")
        a(f"s_mov_b32 m0, {L_GW}")
        a.vmem(f"buffer_load_dwordx4 v1, {R(SGW)}, 0 offen lds")
        a(f"s_mov_b32 m0, {L_GW+1024}")
        a.vmem(f"buffer_load_dwordx4 v2, {R(SGW)}, 0 offen lds")

    def phase_p(self, nload):
        a = self.a; o = self.o
        a("s_movk_i32 s70, 10240")
        self.p_dma()
        self.p_addr()
        a.vmem(f"buffer_load_dwordx4 v[164:167], v38, {R(SSH)}, 0 offen")
        a.vmem(f"buffer_load_dwordx4 v[188:191], v38, {R(SSH)}, 0 offen offset:512")
        L1, L23, LJ, Lno = a.label("Lp1"), a.label("Lp23"), a.label("Lpj"), a.label("Lpno")
        a(f"s_cmp_lt_u32 {WV}, 2\ns_cbranch_scc1 {L1}\ns_cmp_ge_u32 s2, 192\ns_cbranch_scc1 {Lno}")
        s0 = a.snap()
        self.p_w2f_loads()
        a(f"s_branch {Lno}\n{L1}:")
        self.gw_dma()
        a(f"{Lno}:")
        a.restore(s0)
        a.mark("pld")
        self.stamp("Pld")
        self.g1_addr(); self.g1_b1()
        self.g1_dma(0)
        D0 = []
        for n in range(1, o["PD"]): D0 += self.g1_dma_list(n)
        self.pop(D0, 4)
        self.cv_addr(); self.g1_addr2()
        a.wait_vm("pld"); a("s_barrier")
        self.stamp("Pbar")
        L0, L2 = a.label("Lq0"), a.label("Lq2")
        self.p_item_reads(144, False, "pa")
        a(f"s_cmp_eq_u32 {WV}, 0\ns_cbranch_scc1 {L0}")
        s0 = a.snap(); lg0 = dict(a.lg); outs = []
        D = list(D0)
        a(f"s_cmp_lt_u32 {WV}, 2\ns_cbranch_scc1 {L2}\ns_cmp_ge_u32 s2, 192\ns_cbranch_scc1 {L2}")
        self.p_w2f_compute()
        a(f"{L2}:")
        a.restore(s0); a.lg = dict(lg0)
        self.p_item_compute(144, 192, False, "pa", D)
        self.pop(D, 99)
        a.vmem(nload, tag="nonce")
        a(f"s_nop 1\ns_branch {LJ}")
        outs.append(a.snap()); a.restore(s0); a.lg = dict(lg0)
        a(f"{L0}:")
        D = list(D0)
        self.p_item_reads(168, True, "pb")
        self.p_item_compute(144, 192, False, "pa", D); self.p_item_compute(168, 200, True, "pb", D)
        self.pop(D, 99)
        a.vmem(nload, tag="nonce")
        outs.append(a.snap())
        a(f"{LJ}:")
        a.merge(outs)

    def g1_addr(self):
        a = self.a
        a(f"s_lshl_b32 s66, {MT}, 2\ns_add_u32 s66, s66, {WV}\ns_mul_i32 s66, s66, {32*1280}")
        a("v_lshrrev_b32 v1, 3, v0\nv_mul_u32_u24 v1, 1280, v1\nv_add_u32 v1, s66, v1")
        a("v_and_b32 v2, 7, v0\nv_lshrrev_b32 v3, 4, v0\nv_xor_b32 v2, v2, v3")
        a("v_lshl_add_u32 v4, v2, 4, v1")
        a(f"v_xor_b32 v2, 4, v2\nv_lshl_add_u32 v5, v2, 4, v1\nv_add_u32 v5, {10240-1024}, v5")
        a(f"v_add_u32 v6, {20480-2048}, v4\nv_add_u32 v7, {20480-2048}, v5")
        a(f"s_mul_i32 s66, {WV}, 192\ns_mul_i32 s67, {NT}, 192")
        for i in range(3):
            a(f"v_add_u32 v1, s66, v0")
            if i: a(f"v_add_u32 v1, {64*i}, v1")
            a("v_mul_u32_u24 v2, 5462, v1\nv_lshrrev_b32 v2, 16, v2")
            a(f"v_mul_u32_u24 v2, {3072-192}, v2\nv_lshl_add_u32 v2, v1, 4, v2\nv_add_u32 v{8+i}, s67, v2")
            if i: a(f"v_subrev_u32 v{8+i}, {1024*i}, v{8+i}")
        a(f"s_lshl_b32 s77, {WV}, 14\ns_mul_i32 s78, {WV}, 3072\ns_add_u32 s78, s78, {L_W1}")
    def g1_addr2(self):
        a = self.a
        a("v_and_b32 v1, 31, v0\nv_lshrrev_b32 v2, 5, v0\nv_bfe_u32 v3, v0, 1, 3\nv_xor_b32 v3, v3, v2")
        a(f"s_lshl_b32 s66, {WV}, 1\nv_xor_b32 v3, s66, v3\nv_lshlrev_b32 v3, 4, v3")
        a("v_lshlrev_b32 v1, 7, v1\nv_add_u32 v1, s77, v1")
        for s in range(4):
            a(f"v_xor_b32 v{12+s}, {32*s}, v3\nv_add_u32 v{12+s}, v{12+s}, v1")
        a(f"v_or_b32 v3, s66, v2\nv_lshlrev_b32 v3, 4, v3\nv_add_u32 v40, {L_GW}, v3")
        for s in range(1, 4): a(f"v_xor_b32 v{40+s}, {32*s}, v40")
        a("v_bfe_u32 v1, v0, 2, 2\nv_lshl_add_u32 v1, v2, 3, v1\nv_mul_u32_u24 v1, 192, v1")
        a("v_bfe_u32 v3, v0, 4, 1\nv_lshl_add_u32 v1, v3, 5, v1\nv_and_b32 v3, 3, v0\nv_lshl_add_u32 v1, v3, 3, v1")
        for s in range(4):
            a(f"s_xor_b32 s66, {WV}, {s}\ns_mul_i32 s66, s66, 3072\ns_add_u32 s66, s66, {L_W1}\nv_add_u32 v{16+s}, s66, v1")
        a("v_and_b32 v1, 15, v0\nv_bfe_u32 v2, v0, 4, 1\nv_sub_u32 v1, v1, v2\nv_mov_b32 v3, 0x3f803f80")
        for t in range(3):
            a(f"v_cmp_eq_u32 vcc, {4*t}, v1\nv_cndmask_b32 v{20+4*t}, 0, v3, vcc")
            for r in range(1, 4): a(f"v_mov_b32 v{20+4*t+r}, v{20+4*t}")
    def g1_dma_list(self, n):
        slot = n % 4; o = self.o
        L = []
        if n: L += [(f"s_add_u32 {CH}, {CH}, 1", 0), (f"s_cmp_eq_u32 {CH}, 10", 0), (f"s_cselect_b32 {CH}, 0, {CH}", 0)]
        L += [(f"s_lshl_b32 s79, {CH}, 7", 0), (f"s_mul_i32 s80, {CH}, 196608", 0)]
        for i in range(4):
            L.append((f"s_add_u32 m0, s77, {L_X + slot*4096}", 0))
            L.append((f"buffer_load_dwordx4 v{4+i}, {R(SQ)}, s79 offen offset:{1024*i} {o['mx']} lds", 1))
        for i in range(3):
            L.append((f"s_add_u32 m0, s78, {slot*12288}", 0))
            L.append((f"buffer_load_dwordx4 v{8+i}, {R(SW1)}, s80 offen offset:{1024*i} {o['mw1']} lds", 1, f"st{n}" if i == 2 else None))
        out = []; last = None
        for e in L:
            if e[0].startswith("s_add_u32 m0"):
                if e[0] == last: continue
                last = e[0]
            out.append(e)
        return out
    def g1_dma(self, n):
        self.emit(self.g1_dma_list(n))
    def g1_reads(self, q):
        n, s = q >> 2, q & 3
        fb = 96 + 16 * (q % 3); slot = n % 4
        L = [f"ds_read_b128 {v(fb+12,4)}, v{12+s} offset:{slot*4096}"]
        L.append(f"ds_read_b128 {v(144+4*(q%3),4)}, v{40+s} offset:{n*128}")
        for t in range(3):
            for h in range(2):
                L.append(f"ds_read_b64_tr_b16 {v(fb+4*t+2*h,2)}, v{16+s} offset:{slot*12288+64*t+768*h}")
        return L
    def g1_loop(self, hook):
        a = self.a; PD = self.o["PD"]
        a("v_mov_b32 v37, 0\nv_mov_b32 v38, 0\nv_mov_b32 v39, 0\ns_mov_b32 s70, 0x3f803f80")
        a.wait_vm("st0", lg=0); a("s_barrier")
        for q in (0, 1):
            L = self.g1_reads(q)
            for i, t in enumerate(L): a.dsop(t, tag=f"rd{q}" if i == len(L) - 1 else None)
        dq = self.dq = []
        for q in range(40):
            n, s = q >> 2, q & 3
            fb = 96 + 16 * (q % 3)
            rd = self.g1_reads(q + 2) if q + 2 < 40 else []
            bar = (s == 2 and n + 1 < 10)
            dots = []
            for i in range(4):
                dots += [f"v_dot2c_f32_bf16 v37, s70, v{fb+12+i}", f"v_dot2c_f32_bf16 v38, v{fb+12+i}, v{fb+12+i}", f"v_dot2c_f32_bf16 v39, v{144+4*(q%3)+i}, v{fb+12+i}"]
            def mf(t):
                c = v(48 + 16 * t, 16) if q else "0"
                a(f"v_mfma_f32_32x32x16_bf16 {v(48+16*t,16)}, {v(fb+4*t,4)}, {v(fb+12,4)}, {c}")
            def cs(t):
                c = "v[32:35]" if (q or t) else "0"
                a(f"v_mfma_f32_16x16x32_bf16 v[32:35], {v(20+4*t,4)}, {v(fb+4*t,4)}, {c}")
            def rds(k):
                for _ in range(k):
                    if rd:
                        t = rd.pop(0); a.dsop(t, tag=f"rd{q+2}" if not rd else None)
            def dt(k):
                for _ in range(k): a(dots.pop(0))
            a.wait_lg(f"rd{q}")
            mf(0)
            if bar:
                dt(6)
                mf(1)
                dt(6)
                hook(q, "prebar")
                a.wait_vm(f"st{n+1}", lg=0); a("s_barrier")
                if n + PD <= 9:
                    assert not dq
                    dq += self.g1_dma_list(n + PD)
                hook(q, "bar")
                rds(4); mf(2); rds(4); self.pop(dq, 1)
            else:
                rds(3); dt(4); self.pop(dq, 1)
                if s == 0: cs(0)
                mf(1); rds(3); dt(4); self.pop(dq, 1)
                if s == 0: cs(1)
                hook(q, "mid")
                mf(2); rds(2); dt(4)
                if s == 0: cs(2)
            if q == 37:
                self.g1_cs_write()
    def g1_stats(self):
        a = self.a
        for r in (37, 38, 39): a(f"v_mov_b32 v{r+3}, v{r}")
        for r in (37, 38, 39): a(f"v_permlane32_swap_b32 v{r+3}, v{r}")
        a("v_add_f32 v44, v37, v40\nv_add_f32 v45, v38, v41\nv_add_f32 v46, v39, v42")
        inv = "0x3acccccd"
        a(f"v_mul_f32 v44, {inv}, v44\nv_mul_f32 v45, {inv}, v45")
        a("v_fma_f32 v45, -v44, v44, v45\nv_max_f32 v45, 0, v45")
        a("v_cvt_pk_bf16_f32 v45, v45, v46")
        a("v_and_b32 v46, 0xffff0000, v45\nv_lshlrev_b32 v45, 16, v45")
        a("v_add_f32 v45, 0x3727c5ac, v45")
        a("v_mul_f32 v46, 0xbfb8aa3b, v46")
        a("v_cvt_pk_bf16_f32 v45, v45, v45\nv_exp_f32 v46, v46")
        a("v_lshlrev_b32 v45, 16, v45\nv_add_f32 v46, 1.0, v46")
        a("v_sqrt_f32 v45, v45\nv_rcp_f32 v46, v46")
        a("v_cvt_pk_bf16_f32 v36, -v44, v45")
        a("v_cvt_pk_bf16_f32 v46, v46, v46\nv_lshlrev_b32 v46, 16, v46")
        a("v_sub_f32 v45, 1.0, v46\nv_cvt_pk_bf16_f32 v45, v46, v45")
    def g1_finish(self, side, ghook):
        a = self.a
        a("v_and_b32 v1, 31, v0\nv_lshrrev_b32 v2, 5, v0\nv_lshlrev_b32 v47, 2, v1\nv_lshlrev_b32 v1, 5, v1\nv_lshl_add_u32 v1, v2, 4, v1")
        a(f"v_add_u32 v1, {L_T}, v1")
        a("v_mov_b32 v3, 0x02020202\nv_mul_lo_u32 v3, v3, v2\nv_add_u32 v3, 0x01000100, v3")
        a("s_waitcnt lgkmcnt(0)\ns_barrier")
        for t in range(3):
            a.dsop(f"ds_read_b128 {v(144+4*t,4)}, v1 offset:{1024*t}", tag=f"T{t}")
        self.g1_stats()
        a("v_perm_b32 v40, v36, v36, v3\nv_and_b32 v38, 0xffff0000, v36")
        a("v_mov_b32 v41, v40\nv_mov_b32 v42, v40\nv_mov_b32 v43, v40\nv_rcp_f32 v36, v38\nv_mov_b32 v39, v38")
        for t in range(3):
            a.wait_lg(f"T{t}")
            a(f"v_mfma_f32_32x32x16_bf16 {v(48+16*t,16)}, {v(144+4*t,4)}, v[40:43], {v(48+16*t,16)}")
        Ls = a.label("Lgs")
        a(f"s_cmp_lg_u32 {NT}, 0\ns_cbranch_scc1 {Ls}")
        s0 = a.snap()
        a(f"s_lshl2_add_u32 s66, {MT}, {WV}\ns_lshl_b32 s66, s66, 7\ns_add_u32 s66, s66, {WS_ST}\ns_mov_b64 exec, 0xffffffff")
        a.vmem(f"buffer_store_dword v45, v47, {R(SWS)}, s66 offen sc1")
        a(f"s_mov_b64 exec, -1\n{Ls}:")
        a.restore(s0)
        A = -2 * math.sqrt(2 / math.pi) * math.log2(math.e); B = A * 0.044715
        fh = lambda x: "0x%08x" % struct.unpack("<I", struct.pack("<f", x))[0]
        a(f"v_mul_f32 v37, v36, v36\nv_mul_f32 v37, v37, v36\nv_mul_f32 v36, {fh(A)}, v36\nv_mul_f32 v37, {fh(B)}, v37")
        a(f"s_lshl_b32 s66, {MT}, 2\ns_add_u32 s66, s66, {WV}\ns_mul_i32 s66, s66, {2*48*1024}\ns_mul_i32 s67, {NT}, 3072\ns_add_u32 s66, s66, s67\ns_add_u32 s66, s66, {WS_H}")
        a(f"v_bfe_u32 v1, v0, 4, 1\nv_mul_u32_u24 v1, {48*1024}, v1\nv_and_b32 v2, 15, v0\nv_lshl_add_u32 v1, v2, 4, v1")
        a("v_lshrrev_b32 v2, 5, v0\nv_lshl_add_u32 v1, v2, 8, v1\nv_add_u32 v44, s66, v1")
        self.stamp("fin0")
        def sd(k):
            for _ in range(k):
                if side:
                    t = side.pop(0)
                    if callable(t): t()
                    elif t.startswith("ds_"): a.dsop(t)
                    else: a(t)
        for t in range(3):
            for p in range(2):
                P = 48 + 16 * t + 8 * p
                T = 96 + 16 * ((2 * t + p) & 1); O = T + 8
                for i in range(4): a(f"v_pk_mul_f32 {v(T+2*i,2)}, {v(P+2*i,2)}, {v(P+2*i,2)}")
                for i in range(4): a(f"v_pk_fma_f32 {v(T+2*i,2)}, {v(T+2*i,2)}, v[36:37], v[36:37] op_sel:[0,1,0] op_sel_hi:[1,1,0]")
                for i in range(4): a(f"v_pk_mul_f32 {v(T+2*i,2)}, {v(T+2*i,2)}, {v(P+2*i,2)}")
                for i in range(8):
                    a(f"v_exp_f32 v{T+i}, v{T+i}"); sd(2); ghook(2 * t + p, i)
                for i in range(4): a(f"v_pk_fma_f32 {v(T+2*i,2)}, {v(T+2*i,2)}, v[38:39], v[38:39]")
                for i in range(8):
                    a(f"v_rcp_f32 v{T+i}, v{T+i}"); sd(2); ghook(2 * t + p, 8 + i)
                for i in range(4): a(f"v_pk_mul_f32 {v(T+2*i,2)}, {v(T+2*i,2)}, {v(P+2*i,2)}")
                for i in range(4): a(f"v_cvt_pk_bf16_f32 v{O+i}, v{T+2*i}, v{T+2*i+1}")
                a.vmem(f"buffer_store_dwordx4 {v(O,4)}, v44, {R(SWS)}, 0 offen offset:{1024*t+512*p} sc1")
        a.mark("hst")
        sd(999)

    def cv_h_loads(self):
        a = self.a; m = self.o["mssm"]
        for z in range(3):
            a.vmem(f"buffer_load_dwordx4 {v(CV_H+8*z,4)}, v{CV_TID}, {R(SH)}, s{81+z} offen {m}")
            a.vmem(f"buffer_load_dwordx2 {v(CV_H+8*z+4,2)}, v{CV_TID}, {R(SH)}, s{81+z} offen offset:16 {m}")
        a(f"v_bfe_u32 v1, v0, 3, 2\nv_min_u32 v1, 2, v1\nv_mov_b32 v2, s81\nv_mov_b32 v3, s82")
        a("v_cmp_eq_u32 vcc, 1, v1\nv_cndmask_b32 v2, v2, v3, vcc\nv_mov_b32 v3, s83\nv_cmp_eq_u32 vcc, 2, v1\nv_cndmask_b32 v2, v2, v3, vcc")
        a("v_lshrrev_b32 v3, 11, v2")
        a.vmem(f"buffer_load_dwordx2 {v(CV_SPV+2,2)}, v2, {R(SH)}, 0 offen {m}")
        a.vmem(f"buffer_load_ushort v{CV_SPV}, v3, {R(SD)}, 0 offen", tag="cvh")

    def g2_rot(self):
        a = self.a
        if self.o["rot2"]:
            if self.o["map"] == "4x2": a(f"s_and_b32 s66, {MT2}, 7\ns_mul_i32 s66, s66, 3\ns_lshr_b32 s66, s66, 2")
            else: a(f"s_and_b32 s66, {MT2}, 3\ns_mul_i32 s66, s66, 3\ns_lshr_b32 s66, s66, 1")
            a(f"s_add_u32 s14, {WV}, {NT2}\ns_and_b32 s14, s14, 3")
        else:
            a(f"s_mov_b32 s66, 0\ns_mov_b32 s14, {WV}")
        a(f"s_lshl_b32 s{PO}, s66, 11")
        for i in range(1, 6):
            a(f"s_add_u32 s{PO+i}, s{PO+i-1}, 2048\ns_cmp_eq_u32 s{PO+i}, 12288\ns_cselect_b32 s{PO+i}, 0, s{PO+i}")
    def g2_w2f_list(self, vr):
        L = []
        for i in range(60):
            pr, r = divmod(i, 10)
            if r == 0: L.append((f"s_mul_i32 s84, s{PO+pr}, 5", 0))
            elif r % 4 == 0: L.append(("s_add_u32 s84, s84, 4096", 0))
            L.append((f"buffer_load_dwordx4 {ar(4*i,4)}, VR, {R(SWS)}, s84 offen offset:{(r%4)*1024} {self.o['mwf']}", 1))
        return L
    def g2_addr0(self):
        a = self.a
        a(f"s_mul_i32 s66, {MT2}, {4*49152}\ns_mul_i32 s67, {WV}, 12288\ns_add_u32 s66, s66, s67\ns_add_u32 s66, s66, {WS_H}")
        a("v_lshlrev_b32 v14, 4, v0\nv_add_u32 v14, s66, v14")
        for i in range(4):
            a(f"s_add_u32 s66, s14, {i+1}\ns_and_b32 s66, s66, 3\ns_mul_i32 s{85+i}, s66, 49152")
    def g2_addr(self):
        a = self.a
        OW = "s14"
        a("v_lshlrev_b32 v1, 4, v0")
        for i in range(4):
            a(f"s_add_u32 s66, {OW}, {i+1}\ns_and_b32 s66, s66, 3\ns_mul_i32 s66, s66, 15360")
            a(f"s_add_u32 s66, s66, {L_PT + (2-i)*5120 if i < 3 else L_PT}\nv_add_u32 v{5+i}, s66, v1")
        a("v_lshrrev_b32 v1, 4, v0\nv_mul_u32_u24 v12, 40, v1\nv_mul_u32_u24 v1, 20, v1\nv_bfe_u32 v2, v0, 2, 2\nv_add_u32 v1, v1, v2")
        a(f"v_and_b32 v2, 6, v1\nv_bfe_u32 v3, v0, 1, 1\ns_lshl_b32 s66, {OW}, 1\nv_or_b32 v3, s66, v3\nv_xor_b32 v2, v2, v3")
        a(f"v_lshlrev_b32 v1, 7, v1\nv_lshl_add_u32 v1, v2, 4, v1\nv_and_b32 v2, 1, v0\nv_lshl_add_u32 v1, v2, 3, v1\nv_add_u32 v9, {L_Y}, v1\nv_xor_b32 v4, 64, v9")
        a(f"s_mul_i32 s66, {NT2}, 80\ns_mul_i32 s67, {WV}, 24\ns_add_u32 s66, s66, s67\ns_lshl_b32 s66, s66, 12\ns_lshl_b32 s67, {MT2}, 7\ns_add_u32 s66, s66, s67\ns_add_u32 s66, s66, {WS_YT}")
        a("v_lshrrev_b32 v1, 3, v0\nv_and_b32 v2, 6, v1\nv_and_b32 v3, 7, v0\nv_xor_b32 v2, v2, v3\nv_lshlrev_b32 v1, 12, v1\nv_lshl_add_u32 v1, v2, 4, v1\nv_add_u32 v10, s66, v1")
        a(f"s_lshl2_add_u32 s66, {MT2}, {OW}\ns_lshl_b32 s66, s66, 4\nv_and_b32 v1, 15, v0\nv_add_u32 v1, s66, v1")
        a(f"s_mul_i32 s67, {NT2}, 160\nv_add_u32 v12, s67, v12\nv_mul_u32_u24 v11, 1280, v1\nv_add_u32 v11, v11, v12")
        a(f"v_lshlrev_b32 v13, 2, v1\nv_add_u32 v13, {WS_ST}, v13")
    def g2_h_list(self, i):
        L = []
        for k in range(12):
            if k % 2 == 0: L.append((f"s_add_u32 s89, s{85+i}, s{PO+k//2}", 0))
            L.append((f"buffer_load_dwordx4 {v(HR(i,k),4)}, v14, {R(SWS)}, s89 offen offset:{(k%2)*1024} {self.o['mh']}", 1, f"h{i}_{k}"))
        return L
    def g2_y_list(self):
        Ls = self.a.label("Lys")
        L = [(f"s_mul_i32 s66, {WV}, 3072", 0), (f"s_add_u32 m0, s66, {L_Y}", 0)]
        L.append((f"buffer_load_dwordx4 v10, {R(SWS)}, 0 offen sc1 lds", 1))
        L += [(f"s_add_u32 m0, m0, 1024", 0), ("s_mov_b32 s66, 32768", 0), (f"buffer_load_dwordx4 v10, {R(SWS)}, s66 offen sc1 lds", 1)]
        L += [(f"s_add_u32 m0, m0, 1024", 0), ("s_mov_b32 s66, 65536", 0), (f"buffer_load_dwordx4 v10, {R(SWS)}, s66 offen sc1 lds", 1, "y")]
        return L
    def g2_main(self, ypoll, ypos=(2, 30)):
        a = self.a
        Q, B2, YR, PR, U = 224, 234, 244, 164, 132
        K0.G2Q, K0.G2B2 = Q, B2
        side = {}
        def at(st, mi, f): side.setdefault((st, mi), []).append(f)
        for i in range(3):
            D = 24 + 20 * (i & 1)
            for j in range(5):
                at(i + 1, 4 + j, lambda i=i, j=j, D=D: a.dsop(f"ds_write_b128 v{5+i}, {v(D+4*j,4)} offset:{1024*j}"))
        ypoll(at)
        ml = self.g2_misc_list()
        for n, e in enumerate(ml): at(1, 40 + 2 * n, lambda e=e: self.emit([e]))
        at(ypos[0], ypos[1], lambda: self.emit(self.g2_y_list()))
        def bar():
            a.wait_vm("y", lg=0); a("s_barrier")
        at(3, 12, bar)
        k = 13
        for j in range(5):
            at(3, k, lambda j=j: a.dsop(f"ds_read_b64_tr_b16 {v(YR+2*j,2)}, v{4 if j&1 else 9} offset:{512*j}", tag="yr")); k += 1
        for o in range(3):
            for j in range(5):
                at(3, k, lambda o=o, j=j: a.dsop(f"ds_read_b128 {v(PR+20*o+4*j,4)}, v8 offset:{5120*o+1024*j}", tag=f"pr{o}")); k += 1
        XR = [80 + 2 * i for i in range(8)] + [152, 154]
        def pre(i):
            if i == 0:
                a.wait_vm("misc")
                a("v_lshlrev_b32 v16, 16, v15\nv_and_b32 v18, 0xffff0000, v15\nv_mov_b32 v17, v16\nv_mov_b32 v19, v18")
            a(f"v_lshlrev_b32 v{XR[i]}, 16, v{Q+i}\nv_and_b32 v{XR[i]+1}, 0xffff0000, v{Q+i}\nv_pk_mul_f32 {v(XR[i],2)}, {v(XR[i],2)}, v[16:17]")
        for i in range(8): at(2, 40 + 2 * i, lambda i=i: pre(i))
        for i in range(8, 10): at(3, i - 8, lambda i=i: pre(i))
        for i in range(10): at(3, 2 + i, lambda i=i: a(f"v_lshlrev_b32 v{U+2*i}, 16, v{B2+i}\nv_and_b32 v{U+2*i+1}, 0xffff0000, v{B2+i}"))
        def ymul(i):
            if i == 0: a.wait_lg("yr")
            a(f"v_lshlrev_b32 v22, 16, v{YR+i}\nv_and_b32 v23, 0xffff0000, v{YR+i}\nv_pk_mul_f32 {v(XR[i],2)}, {v(XR[i],2)}, v[22:23]")
        for i in range(10): at(3, 22 + i, lambda i=i: ymul(i))
        def addp(o, i):
            if i == 0: a.wait_lg(f"pr{o}")
            a(f"v_pk_add_f32 {v(U+4*i,2)}, {v(U+4*i,2)}, {v(PR+20*o+4*i,2)}\nv_pk_add_f32 {v(U+4*i+2,2)}, {v(U+4*i+2,2)}, {v(PR+20*o+4*i+2,2)}")
        k = 34
        for o in range(3):
            for i in range(5): at(3, k, lambda o=o, i=i: addp(o, i)); k += 1
        for i in range(5):
            at(3, 50 + i, lambda i=i: a(f"v_pk_fma_f32 {v(U+4*i,2)}, {v(U+4*i,2)}, v[18:19], {v(XR[2*i],2)}\nv_pk_fma_f32 {v(U+4*i+2,2)}, {v(U+4*i+2,2)}, v[18:19], {v(XR[2*i+1],2)}"))
        for st in range(4):
            D = 24 + 20 * (st & 1)
            for kk in range(12):
                a.wait_vm(f"h{st}_{kk}")
                for j in range(5):
                    c = v(D + 4 * j, 4) if kk else "0"
                    a(f"v_mfma_f32_16x16x32_bf16 {v(D+4*j,4)}, {ar((kk*5+j)*4,4)}, {v(HR(st,kk),4)}, {c}")
                    for f in side.pop((st, kk * 5 + j), []): f()
        assert not side, side.keys()
        D = 44
        for i in range(10):
            a(f"v_pk_fma_f32 {v(U+2*i,2)}, {v(D+2*i,2)}, v[18:19], {v(U+2*i,2)}")
            if i in (3, 7, 9):
                for i2 in range(i - (3 if i < 9 else 1), i + 1): a(f"v_cvt_pk_bf16_f32 v{Q+i2}, v{U+2*i2}, v{U+2*i2+1}")
                if i == 3: a.vmem(f"buffer_store_dwordx4 {v(Q,4)}, v11, {R(SO)}, 0 offen")
                if i == 7: a.vmem(f"buffer_store_dwordx4 {v(Q+4,4)}, v11, {R(SO)}, 0 offen offset:16")
        a.vmem(f"buffer_store_dwordx2 {v(Q+8,2)}, v11, {R(SO)}, 0 offen offset:32")

    def build(self):
        a = self.a; o = self.o
        if self.prof: a("s_memrealtime s[100:101]")
        self.prologue()
        self.stamp("pro")
        Ln = a.label("Lnp")
        a(f"s_cmp_lg_u32 s2, 0\ns_cbranch_scc1 {Ln}\ns_cmp_lg_u32 {WV}, 1\ns_cbranch_scc1 {Ln}")
        a("s_memrealtime s[66:67]\ns_waitcnt lgkmcnt(0)\ns_or_b32 s66, s66, 1\nv_mov_b32 v1, s66\ns_mov_b64 exec, 1")
        a(f"buffer_store_dword v1, off, {R(SDBG)}, 0 sc1\ns_mov_b64 exec, -1\ns_nop 1")
        a(f"{Ln}:")
        nload = f"buffer_load_dword v164, off, {R(SDBG)}, 0 sc1"
        self.phase_p(nload)
        self.stamp("P")
        self.g1_b1_store()
        a(f"v_lshlrev_b32 v165, 4, v0\ns_mov_b32 s76, {F1}")
        self.g2_rot(); self.g2_w2f_addr(11)
        p1load = f"buffer_load_dwordx4 v[160:163], v165, {R(SWS)}, s76 offen sc1"
        W = self.g2_w2f_list(0)
        self.wreg = "v11"
        def popw(k):
            while k > 0 and W:
                e = W.pop(0); self.emit([(e[0].replace("VR", self.wreg),) + e[1:]]); k -= e[1]
        def hook(q, pos):
            n = q >> 2
            if pos == "prebar" and n == o["pub1"]:
                Lc, Lok = a.label("Lnc"), a.label("Lnok")
                self.stamp("G1a")
                a(f"s_movk_i32 s68, {SPIN}")
                a.wait_vm("nonce")
                a(f"{Lc}:\nv_readfirstlane_b32 {NONCE}, v164\ns_cmp_lg_u32 {NONCE}, 0\ns_cbranch_scc1 {Lok}")
                a(f"s_sub_u32 s68, s68, 1\ns_cbranch_scc1 {Lok}\ns_sleep 1\n{nload}\ns_waitcnt vmcnt(0)\ns_branch {Lc}\n{Lok}:")
            if pos == "bar" and n == o["pub1"]:
                self.stamp("pub1")
                Ls = a.label("Lsk")
                a(f"s_cmp_lg_u32 {WV}, 0\ns_cbranch_scc1 {Ls}")
                s0 = a.snap()
                a(f"s_lshl2_add_u32 s66, s2, {F1}")
                self.one_lane_store(164, "s66")
                a(f"{Ls}:")
                a.restore(s0)
            if pos == "mid" and q == 4 * o["poll1"] + 5:
                a.vmem(p1load, tag="poll1")
            if pos == "mid" and q == 4 * o["chk1"] + 5:
                self.cv_h_loads()
                self.stamp("G1b")
                self.check("poll1", p1load, [160, 161, 162, 163])
                self.stamp("chk1")
                self.cv_kv_loads()
            if pos in ("mid", "bar") and q > 4 * o["chk1"] + 5 and not self.dq: popw(o["wq"])
            if pos == "mid" and q == 39:
                self.cv_special()
        self.g1_loop(hook)
        self.stamp("G1")
        a("v_mov_b32 v13, v11\nv_mov_b32 v15, v164")
        self.wreg = "v13"
        side = self.capture(lambda: self.cv_h_write(T=168))
        side.append(lambda: a.wait_vm("cvkv"))
        side += [f"ds_write_b128 v{CV_TID}, {v(CV_KV+4*z,4)} offset:{L_KV+z*4608}" for z in range(3)]
        side += self.capture(self.cv_addr2) + self.capture(self.g2_addr0)
        def fl2():
            a(f"s_lshl_b32 s74, {MT}, 8\ns_lshl3_add_u32 s74, {NT}, s74\ns_lshr_b32 s66, {WV}, 1\ns_lshl_b32 s66, s66, 7\ns_add_u32 s74, s74, s66")
            a(f"s_and_b32 s66, {WV}, 1\ns_lshl2_add_u32 s74, s66, s74\ns_add_u32 s74, s74, {F2}")
            a(f"s_lshl_b32 s75, {MT2}, 7\ns_add_u32 s75, s75, {F2}\nv_and_b32 v16, 31, v0\nv_lshlrev_b32 v16, 2, v16")
        side += self.capture(fl2)
        def ghook(g, pos):
            per = o["wg"]
            if pos in [int(16 * i / per) for i in range(per)]: popw(1)
        self.g1_finish(side, ghook)
        self.stamp("gelu")
        p2load = f"buffer_load_dword v17, v16, {R(SWS)}, s75 offen sc1"
        Wsave = list(W)
        Hrest = []
        def cvhook(odd):
            W[:] = list(Wsave)
            H0 = self.g2_h_list(0); H1 = self.g2_h_list(1) + self.g2_h_list(2)[:6]
            cnt = [0]
            def h(si, mi):
                c = cnt[0]; cnt[0] += 1
                if c % o["wc"] == 1: popw(1)
                if c == o["pub2"]:
                    self.stamp("cva"); a.wait_vm("hst"); self.one_lane_store(15, "s74"); self.stamp("pub2")
                if c == o["poll2"]:
                    a.vmem(p2load, tag="poll2")
                if c == o["chk2"]:
                    popw(99)
                    self.stamp("cvb"); self.check("poll2", p2load, [17]); self.stamp("chk2")
                if c > o["chk2"] and c % o["hc"] == 0:
                    if H0: self.pop(H0, 1)
                    elif c >= 162: self.pop(H1, 1)
                if c == 179:
                    Hrest[:] = H0 + H1 + self.g2_h_list(2)[6:] + self.g2_h_list(3)
                    self.stamp("cvm")
            return h
        self.cv_main(hook=cvhook)
        self.stamp("conv")
        AD = self.capture(self.g2_addr)
        AD += [f"s_lshl2_add_u32 s74, s2, {WV}", f"s_lshl2_add_u32 s74, s74, {F3}", f"s_lshl_b32 s75, {NT2}, 9", f"s_add_u32 s75, s75, {F3}",
               "v_lshlrev_b32 v20, 3, v0", "v_mov_b32 v21, v15"]
        p3load = f"buffer_load_dwordx2 v[22:23], v20, {R(SWS)}, s75 offen sc1"
        while Hrest and not any(len(e) > 2 and e[2] == "h1_0" for e in Hrest[:0]) and any(len(e) > 2 and e[2].startswith("h0_") for e in Hrest):
            self.pop(Hrest, 1)
        self.pop(Hrest, 4)
        def ypoll(at):
            for i in range(0, len(AD), 2):
                at(0, 2 + i // 2, lambda i=i: a("\n".join(AD[i:i + 2])))
            assert 2 + len(AD) // 2 < 55
            n = sum(e[1] for e in Hrest)
            for i in range(n):
                c = 1 + i * o["hg"]
                at(c // 60, c % 60, lambda: self.pop(Hrest, 1))
            def pub():
                a.wait_vm("yst"); self.one_lane_store(21, "s74")
            at(0, 58, pub)
            at(2, 5, lambda: a.vmem(p3load, tag="poll3"))
            at(2, 29, lambda: self.check("poll3", p3load, [22, 23]))
            if self.prof:
                for st, mi, nm in ((0, 57, "g2s0"), (0, 59, "pub3"), (1, 59, "g2s1"), (2, 28, "g2s2a"), (2, 31, "chk3"), (3, 11, "g2s3a"), (3, 13, "ybar")):
                    at(st, mi, lambda nm=nm: self.stamp(nm))
        self.g2_main(ypoll)
        self.stamp("g2end")
        if self.prof:
            a(f"s_lshl2_add_u32 s66, s2, {WV}\ns_lshl_b32 s66, s66, 7\ns_add_u32 s66, s66, {WS_SIZE}\ns_mov_b32 s{SWS+2}, {WS_SIZE+131072}")
            a("s_waitcnt vmcnt(0)\ns_memrealtime s[90:91]\ns_waitcnt lgkmcnt(0)")
            a("v_mov_b32 v1, 0")
            for i in range(len(self.names)):
                if i < 9: a(f"v_writelane_b32 v1, s{92+i}, {i}")
                else: a(f"v_accvgpr_read_b32 v2, a{240+i-9}\ns_nop 1\nv_readfirstlane_b32 s67, v2\ns_nop 4\nv_writelane_b32 v1, s67, {i}")
            a("v_writelane_b32 v1, s90, 29\ns_getreg_b32 s67, hwreg(HW_REG_XCC_ID)\nv_writelane_b32 v1, s67, 30\nv_writelane_b32 v1, s101, 31")
            a("v_lshlrev_b32 v2, 2, v0\ns_mov_b64 exec, 0xffffffff")
            a(f"buffer_store_dword v1, v2, {R(SWS)}, s66 offen")
            a.lines.insert(0, "    ; stamps: " + ",".join(self.names))
        self.epilogue()
        d = kern(KN + "_kernel", self); d["sgpr"] = 102
        return build_file([d])

if __name__ == "__main__":
    out = sys.argv[1]
    opt = {}; prof = False
    for x in sys.argv[2:]:
        if x == "prof": prof = True
        else:
            k_, v_ = x.split("=")
            try: opt[k_] = int(v_)
            except ValueError: opt[k_] = v_.replace("+", " ")
    open(out, "w").write(G("f", prof, **opt).build())
```

```python
import sys; sys.path.insert(0, "gen")
import struct, math
import k as K0
import g as G0
from k import *
from g import G, HR, PO, CH, SPIN

F1 = WS_FL; F2 = WS_FL + 4096; F3 = WS_FL + 8192; F0 = WS_FL + 12288
L_X = 0; L_W1 = 65536; L_K = 114688; L_V = 126976; L_SP = 139264; L_T = 151552; L_GW = 155648; L_ON = 157696
K0.L_T = L_T; G0.L_T = L_T; G0.L_GW = L_GW
RK, RV, NV, SHA, SHB, KP, SP, AC, RB = 156, 167, 175, 176, 180, 184, 206, 214, 230
PA, SA, PB, SB, WA, WS, WS2, B1A = 237, 238, 239, 242, 243, 244, 245, 246

class H(G):
    def __init__(self, name, prof=False, **opt):
        super().__init__(name, prof)
        self.o.update(dict(order="0w1k", sr=16, dr0=4, dq0=6, poll0=22, chk0=28, poll1=33, chk1=39, qssm=26, qn=3, wq=2, wg=5, wc=5))
        self.o.update(opt)
    def check(self, tag, load, regs):
        a = self.a
        Lc, Lok = a.label("Lchk"), a.label("Lok")
        a(f"s_movk_i32 s20, {SPIN}")
        a.wait_vm(tag)
        a(f"{Lc}:")
        a(f"v_cmp_ne_u32 vcc, {NONCE}, v{regs[0]}")
        for r in regs[1:]:
            a(f"v_cmp_ne_u32 s[22:23], {NONCE}, v{r}\ns_or_b64 vcc, vcc, s[22:23]")
        a(f"s_nop 1\ns_cbranch_vccz {Lok}")
        a(f"s_sub_u32 s20, s20, 1\ns_cbranch_scc1 {Lok}")
        a("s_sleep 1")
        a(load)
        a(f"s_waitcnt vmcnt(0)\ns_branch {Lc}")
        a(f"{Lok}:")
    def e1(self, t):
        a = self.a
        if callable(t): t(); return
        tag = None
        if isinstance(t, tuple): t, tag = t
        if t.startswith("ds_"): a.dsop(t, tag=tag)
        elif t.startswith("buffer_"): a.vmem(t, tag=tag)
        else: a(t)

    def gw_dma(self):
        a = self.a
        a(f"s_and_b32 s66, {WV}, 1\ns_lshl_b32 s66, s66, 10\ns_add_u32 m0, s66, {L_GW}\ns_lshl_b32 s67, {CH}, 7\ns_add_u32 s66, s66, s67")
        a("v_lshlrev_b32 v1, 4, v0\nv_add_u32 v1, s66, v1\nv_subrev_u32 v3, 1280, v1\nv_min_u32 v1, v1, v3")
        a("s_waitcnt lgkmcnt(0)")
        a.vmem(f"buffer_load_dwordx4 v1, {R(SGW)}, 0 offen lds")
    def w2_dma(self):
        a = self.a
        a(f"s_lshr_b32 s66, s2, 2\ns_mul_i32 s66, s66, 40960\ns_and_b32 s67, s2, 3\ns_mul_i32 s67, s67, 320\ns_add_u32 s66, s66, s67")
        a(f"s_cmp_ge_u32 s2, 192\ns_cselect_b32 s66, 0x80000000, s66\ns_cmp_eq_u32 {WV}, 3\ns_cselect_b32 s69, 0x80000000, s66")
        a(f"s_mul_i32 s67, {WV}, 192\ns_mul_i32 s68, {WV}, 3072\ns_add_u32 m0, s68, {L_SP}")
        for i in range(3):
            a(f"v_add_u32 v1, s67, v0")
            if i: a(f"v_add_u32 v1, {64*i}, v1")
            a(f"v_mul_u32_u24 v2, 3277, v1\nv_lshrrev_b32 v2, 16, v2\nv_mul_u32_u24 v2, 960, v2\nv_lshl_add_u32 v2, v1, 4, v2")
            a(f"v_add_u32 v2, {'s69' if i else 's66'}, v2")
            if i: a("s_add_u32 m0, m0, 1024")
            a.vmem(f"buffer_load_dwordx4 v2, {R(SW2)}, 0 offen {self.o['mw2']} lds")
        a.mark("pw2")
    def kv_dma(self):
        a = self.a; m = self.o["mkv"]
        a("s_movk_i32 s70, 10240")
        a(f"s_mul_i32 s66, {MT2}, 81920\ns_mul_i32 s67, {NT2}, 160\ns_add_u32 s66, s66, s67\ns_lshl_b32 s67, {WV}, 6\ns_lshl_b32 s68, {WV}, 10")
        a("v_bfrev_b32 v46, 1")
        for j in range(3):
            a(f"v_add_u32 v1, s67, v0")
            if j: a(f"v_add_u32 v1, {256*j}, v1")
            a("v_mul_u32_u24 v2, 6394, v1\nv_lshrrev_b32 v2, 19, v2")
            a("v_mul_u32_u24 v3, 82, v2\nv_sub_u32 v3, v1, v3")
            a("v_mul_u32_u24 v40, 205, v3\nv_lshrrev_b32 v40, 11, v40")
            a("v_mul_u32_u24 v40, 1120, v40\nv_lshl_add_u32 v40, v3, 4, v40")
            a("v_mad_u32_u24 v40, v2, s70, v40\nv_add_u32 v40, s66, v40")
            a("v_cmp_gt_u32 vcc, 80, v3\nv_cndmask_b32 v40, v46, v40, vcc")
            a("v_subrev_u32 v41, 3840, v40")
            if j == 2:
                a("v_cmp_gt_u32 vcc, 686, v1\nv_cndmask_b32 v41, v46, v41, vcc\nv_cmp_gt_u32 vcc, 656, v1\nv_cndmask_b32 v40, v46, v40, vcc")
            a(f"s_add_u32 m0, s68, {L_K + 4096*j}")
            a.vmem(f"buffer_load_dwordx4 v41, {R(SK)}, 0 offen {m} lds")
            a(f"s_add_u32 m0, s68, {L_V + 4096*j}")
            a.vmem(f"buffer_load_dwordx4 v40, {R(SV)}, 0 offen {m} lds")
        a(f"s_mul_i32 s66, {NT2}, 640\ns_lshl_b32 s67, {WV}, 7\ns_add_u32 s67, s66, s67\nv_lshrrev_b32 v2, 3, v0\nv_lshlrev_b32 v2, 4, v2")
        a.vmem(f"buffer_load_dwordx4 {v(SHA,4)}, v2, {R(SSH)}, s67 offen")
        a(f"s_lshl_b32 s67, {WV}, 5\ns_add_u32 s67, s66, s67\nv_lshrrev_b32 v2, 5, v0\nv_lshlrev_b32 v2, 4, v2")
        a.vmem(f"buffer_load_dwordx4 {v(SHB,4)}, v2, {R(SSH)}, s67 offen offset:512")
        a(f"s_mul_i32 s66, {WV}, 16\ns_mul_i32 s67, {NT}, 96\nv_add_u32 v{B1A}, s66, v0")
        a(f"v_add_u32 v1, s67, v{B1A}\nv_lshlrev_b32 v1, 1, v1")
        a.vmem(f"buffer_load_ushort v248, v1, {R(SB1)}, 0 offen")
        a.mark("pkv")
    def p_addr(self):
        a = self.a
        a("v_and_b32 v1, 7, v0\nv_lshrrev_b32 v2, 3, v0")
        a(f"s_lshl_b32 s67, {WV}, 5\ns_add_u32 s66, s67, {L_K}")
        a(f"v_mul_u32_u24 v3, 1312, v1\nv_lshl_add_u32 v3, v2, 2, v3\nv_add_u32 v{PA}, s66, v3")
        a(f"s_mul_i32 s68, {NT2}, {80*4096}\ns_lshl_b32 s67, {MT2}, 7\ns_sub_u32 s68, s68, s67\ns_lshl_b32 s67, {WV}, 16\ns_add_u32 s66, s68, s67\ns_add_u32 s66, s66, {WS_KVR+4080}")
        a(f"v_lshlrev_b32 v3, 13, v2\nv_lshlrev_b32 v1, 4, v1\nv_sub_u32 v3, v3, v1\nv_add_u32 v{SA}, s66, v3")
        a("s_movk_i32 s71, 4096")
        a("v_and_b32 v1, 31, v0\nv_lshrrev_b32 v2, 5, v0")
        a(f"s_lshl_b32 s67, {WV}, 14\ns_add_u32 s66, s68, s67\ns_add_u32 s66, s66, {WS_KVR+64*4096+4092}")
        a(f"v_lshlrev_b32 v3, 13, v2\nv_lshlrev_b32 v{SB}, 2, v1\nv_sub_u32 v3, v3, v{SB}\nv_add_u32 v{SB}, s66, v3")
        a(f"s_lshl3_add_u32 s66, {WV}, {L_K+128}\nv_lshl_add_u32 v2, v2, 2, s66")
        for i in range(3):
            if i: a("v_add_u32 v1, 1, v1")
            a(f"v_mul_u32_u24 v3, 320, v1\nv_add_u32 v3, v3, v2\nv_lshrrev_b32 v{PB+i}, 2, v1\nv_lshl_add_u32 v{PB+i}, v{PB+i}, 5, v3")
        a("v_lshrrev_b32 v1, 5, v0\nv_bfe_u32 v2, v0, 2, 3\nv_lshl_add_u32 v1, v1, 4, v2")
        a("v_mul_u32_u24 v1, 320, v1\nv_and_b32 v2, 3, v0\nv_mul_u32_u24 v2, 40, v2")
        a(f"s_and_b32 s68, {WV}, 1\ns_lshr_b32 s69, {WV}, 1\ns_mul_i32 s66, s68, 160\ns_mul_i32 s67, s69, 24\ns_add_u32 s66, s66, s67\ns_add_u32 s66, s66, {L_SP}\nv_add3_u32 v{WA}, v1, v2, s66")
        a(f"s_and_b32 s66, s2, 3\ns_lshl1_add_u32 s68, s66, s68\ns_mul_i32 s66, s68, {48*5120}\ns_lshr_b32 s67, s2, 2")
        a(f"s_lshl_b32 s68, s68, 6\ns_add_u32 s68, s68, s67\ns_lshl1_add_u32 s68, s68, s69\ns_lshl2_add_u32 s72, s68, {F0}")
        a(f"s_mul_i32 s67, s67, 5120\ns_add_u32 s66, s66, s67\ns_mul_i32 s67, s69, 3072\ns_add_u32 s66, s66, s67\ns_add_u32 s66, s66, {WS_W2F}")
        a("s_cmp_ge_u32 s2, 192\ns_cselect_b32 s66, 0x80000000, s66\ns_cmp_eq_u32 s69, 1\ns_cselect_b32 s67, 0x80000000, s66")
        a(f"v_lshlrev_b32 v2, 4, v0\nv_add_u32 v{WS}, s66, v2\nv_add_u32 v{WS2}, s67, v2")
        a(f"s_lshl_b32 s66, {NT2}, 5\ns_add_u32 s66, s66, {MT2}\ns_lshl2_add_u32 s66, s66, {WV}\ns_lshl2_add_u32 s73, s66, {F1}")
        a(f"s_lshl_b32 s66, {NT2}, 9\ns_mul_i32 s67, {WV}, 96\ns_add_u32 s66, s66, s67\ns_add_u32 s76, s66, {F0}")
        a(f"s_lshr_b32 s66, s2, 5\ns_lshl_b32 s66, s66, 9\ns_add_u32 s70, s66, {F1}")
        a(f"v_lshlrev_b32 v{B1A}, 5, v{B1A}\nv_add_u32 v{B1A}, {L_T}, v{B1A}\nv_mov_b32 v249, 0\nv_mov_b32 v250, 0\nv_mov_b32 v251, 0")
    def ones_init(self):
        a = self.a
        a(f"s_cmp_lt_u32 {WV}, 2\ns_cselect_b32 s66, 0x3f803f80, 0\ns_lshl_b32 s67, {WV}, 10\ns_add_u32 s67, s67, {L_ON}")
        for i in range(4): a(f"v_mov_b32 v{44+i}, s66")
        a("v_lshlrev_b32 v1, 4, v0\nv_add_u32 v1, s67, v1")
        a.dsop("ds_write_b128 v1, v[44:47]")
    def g1_addr2(self):
        super().g1_addr2()
        a = self.a
        a(f"v_mov_b32 v1, {L_ON+128}\nv_and_b32 v2, 3, v0\nv_cmp_eq_u32 vcc, 0, v2\nv_cndmask_b32 v40, v40, v1, vcc")
        a(f"v_mov_b32 v1, {L_ON+2048+144}\nv_lshrrev_b32 v2, 2, v0\nv_xor_b32 v2, v2, v0\nv_and_b32 v2, 4, v2\nv_cmp_ne_u32 vcc, 0, v2\nv_cndmask_b32 v40, v40, v1, vcc")
        for s in range(1, 4): a(f"v_xor_b32 v{40+s}, {32*s}, v40")

    def side_w2(self):
        a = self.a; L = []
        for i in range(3):
            L.append(f"ds_read_b64_tr_b16 {v(KP+4*i,2)}, v{WA} offset:{8*i}")
            L.append((f"ds_read_b64_tr_b16 {v(KP+4*i+2,2)}, v{WA} offset:{8*i+2560}", f"wf{i}"))
        L += [None] * 8
        for i in range(3):
            L.append(lambda i=i: a.wait_lg(f"wf{i}"))
            L.append((f"buffer_store_dwordx4 {v(KP+4*i,4)}, v{WS2 if i == 2 else WS}, {R(SWS)}, 0 offen offset:{1024*i} sc1", "w2st"))
        return L
    def side_kv(self):
        a = self.a; L = []
        for i in range(11): L.append((f"ds_read_b32 v{RK+i}, v{PA} offset:{(i>>3)*1312+(i&7)*160}", "pak"))
        def sun(SH):
            for j in range(4):
                for c in range(2):
                    src = SH + 2 * c + (j >> 1)
                    L.append(f"v_and_b32 v{SP+2*j+c}, 0xffff0000, v{src}" if j & 1 else f"v_lshlrev_b32 v{SP+2*j+c}, 16, v{src}")
        def unp(d, s): L.extend([f"v_lshlrev_b32 v{d}, 16, v{s}", f"v_and_b32 v{d+1}, 0xffff0000, v{s}"])
        def conv(n):
            for j in (3, 2, 1, 0):
                for i in range(n):
                    kp = KP + 2 * (i + 3 - j)
                    if j == 3: L.append(f"v_pk_mul_f32 {v(AC+2*i,2)}, {v(kp,2)}, {v(SP+2*j,2)}")
                    else: L.append(f"v_pk_fma_f32 {v(AC+2*i,2)}, {v(kp,2)}, {v(SP+2*j,2)}, {v(AC+2*i,2)}")
        sun(SHA)
        for i in range(8): L.append((f"ds_read_b32 v{RV+i}, v{PA} offset:{L_V-L_K+i*160}", "pav"))
        L.append(lambda: a.wait_lg("pak"))
        for i in range(11): unp(KP + 2 * i, RK + i)
        for i in range(5): L.append(f"ds_read_b32 v{RB+i}, v{PB+(i>>1)} offset:{(i&1)*160}")
        for i in range(2): L.append((f"ds_read_b32 v{RB+5+i}, v{PB} offset:{L_V-L_K+i*160}", "pb"))
        conv(8)
        L.append(lambda: a.wait_lg("pav"))
        for i in range(8): unp(KP + 2 * i, RV + i)
        for i in range(8): L.append(f"v_pk_mul_f32 {v(AC+2*i,2)}, {v(AC+2*i,2)}, {v(KP+2*i,2)}")
        for c in range(2):
            for m in range(4): L.append(f"v_cvt_pk_bf16_f32 v{RK+4*c+m}, v{AC+2*(7-2*m)+c}, v{AC+2*(6-2*m)+c}")
            L.append(f"buffer_store_dwordx4 {v(RK+4*c,4)}, v{SA}, {R(SWS)}, {'s71' if c else '0'} offen sc1")
        sun(SHB)
        L.append(lambda: a.wait_lg("pb"))
        for i in range(5): unp(KP + 2 * i, RB + i)
        for i in range(2): unp(KP + 10 + 2 * i, RB + 5 + i)
        conv(2)
        for i in range(2): L.append(f"v_pk_mul_f32 {v(AC+2*i,2)}, {v(AC+2*i,2)}, {v(KP+10+2*i,2)}")
        for c in range(2): L.append(f"v_cvt_pk_bf16_f32 v{RK+8+c}, v{AC+2+c}, v{AC+c}")
        for c in range(2): L.append((f"buffer_store_dword v{RK+8+c}, v{SB}, {R(SWS)}, {'s71' if c else '0'} offen sc1", "kvst"))
        L.append(f"ds_write_b128 v{B1A}, v[248:251] offset:16")
        return L

    def g1_loop(self, hook, dq):
        a = self.a; o = self.o; PD = o["PD"]
        a.wait_vm("st0", lg=0); a("s_barrier")
        self.stamp("bar0")
        for q in (0, 1):
            L = self.g1_reads(q)
            for i, t in enumerate(L): a.dsop(t, tag=f"rd{q}" if i == len(L) - 1 else None)
        self.dq = dq; side = self.side = []
        pend = {"pw2": self.side_w2, "pkv": self.side_kv}
        def cover(n):
            for t in list(pend):
                if a.vm[t] >= a.vm[f"st{n}"]: side.extend(pend.pop(t)())
        cover(0)
        for q in range(40):
            n, s = q >> 2, q & 3
            fb = 96 + 16 * (q % 3)
            rd = self.g1_reads(q + 2) if q + 2 < 40 else []
            bar = (s == 2 and n + 1 < 10)
            def mf(t):
                c = v(48 + 16 * t, 16) if q else "0"
                a(f"v_mfma_f32_32x32x16_bf16 {v(48+16*t,16)}, {v(fb+4*t,4)}, {v(fb+12,4)}, {c}")
            def cs(t):
                if s: return
                c = "v[32:35]" if (q or t) else "0"
                a(f"v_mfma_f32_16x16x32_bf16 v[32:35], {v(20+4*t,4)}, {v(fb+4*t,4)}, {c}")
            def sq(h):
                c = "v[36:39]" if (q or h) else "0"
                a(f"v_mfma_f32_4x4x4_16b_bf16 v[36:39], {v(fb+12+2*h,2)}, {v(fb+12+2*h,2)}, {c}")
            def st():
                c = "v[44:47]" if q else "0"
                a(f"v_mfma_f32_16x16x32_bf16 v[44:47], {v(144+4*(q%3),4)}, {v(fb+12,4)}, {c}")
            def rds(k):
                for _ in range(k):
                    if rd:
                        t = rd.pop(0); a.dsop(t, tag=f"rd{q+2}" if not rd else None)
            def sd(k):
                for _ in range(k):
                    if side:
                        t = side.pop(0)
                        if t is not None: self.e1(t)
            dr = (o["dr0"] if q < o["dq0"] else 2) // 2
            sr = o["sr"]; s1 = sr // 4
            a.wait_lg(f"rd{q}")
            mf(0)
            if bar:
                self.pop(dq, dr - 1); sd(2 * s1); sq(0)
                mf(1); sd(s1); st(); sd(s1)
                hook(q, "prebar")
                while f"st{n+1}" not in a.vm: self.pop(dq, 1)
                a.wait_vm(f"st{n+1}", lg=0); a("s_barrier")
                if n + PD <= 9: dq += self.g1_dma_list(n + PD)
                rds(4); mf(2); rds(4); self.pop(dq, dr); sq(1)
                cover(n + 1)
                hook(q, "bar")
            else:
                rds(3); self.pop(dq, dr); sd(s1); sq(0); cs(0)
                mf(1); rds(3); self.pop(dq, dr); sd(s1); st(); cs(1); sd(s1)
                hook(q, "mid")
                mf(2); rds(2); sd(sr - 3 * s1); sq(1); cs(2)
            if q == 37:
                self.g1_cs_write()
            if q in (9, 19, 29): self.stamp(f"q{q}")
        assert not dq and not side and not pend
    def g1_stats(self):
        a = self.a
        a("s_mov_b32 s66, 0xaaaaaaaa\ns_mov_b32 s67, s66\ns_mov_b32 s68, 0xcccccccc\ns_mov_b32 s69, s68")
        a("v_cndmask_b32 v36, v36, v37, s[66:67]\nv_cndmask_b32 v38, v38, v39, s[66:67]\nv_cndmask_b32 v36, v36, v38, s[68:69]")
        a("v_mov_b32 v37, v36\nv_mov_b32 v46, v45\nv_permlane32_swap_b32 v36, v37\nv_add_f32 v45, v36, v37")
        inv = "0x3acccccd"
        a(f"v_mul_f32 v44, {inv}, v44\nv_mul_f32 v45, {inv}, v45")
        a("v_fma_f32 v45, -v44, v44, v45\nv_max_f32 v45, 0, v45")
        a("v_cvt_pk_bf16_f32 v45, v45, v46")
        a("v_and_b32 v46, 0xffff0000, v45\nv_lshlrev_b32 v45, 16, v45")
        a("v_add_f32 v45, 0x3727c5ac, v45")
        a("v_mul_f32 v46, 0xbfb8aa3b, v46")
        a("v_cvt_pk_bf16_f32 v45, v45, v45\nv_exp_f32 v46, v46")
        a("v_lshlrev_b32 v45, 16, v45\nv_add_f32 v46, 1.0, v46")
        a("v_sqrt_f32 v45, v45\nv_rcp_f32 v46, v46")
        a("v_cvt_pk_bf16_f32 v36, -v44, v45")
        a("v_cvt_pk_bf16_f32 v46, v46, v46\nv_lshlrev_b32 v46, 16, v46")
        a("v_sub_f32 v45, 1.0, v46\nv_cvt_pk_bf16_f32 v45, v46, v45")

    def build(self):
        a = self.a; o = self.o
        if self.prof: a("s_memrealtime s[100:101]")
        if self.prof: self.stamp("pro")
        self.prologue()
        self.g1_addr(); self.gw_dma()
        nst = 0
        for c in o["order"]:
            if c.isdigit():
                assert int(c) == nst; self.g1_dma(nst); nst += 1
                if nst == 1:
                    self.stamp("iss0")
                    Ln = a.label("Lnp")
                    a(f"s_cmp_lg_u32 s2, 0\ns_cbranch_scc1 {Ln}\ns_cmp_lg_u32 {WV}, 1\ns_cbranch_scc1 {Ln}")
                    a("s_memrealtime s[66:67]\ns_waitcnt lgkmcnt(0)\ns_or_b32 s66, s66, 1\nv_mov_b32 v1, s66\ns_mov_b64 exec, 1")
                    a(f"buffer_store_dword v1, off, {R(SDBG)}, 0 sc1\ns_mov_b64 exec, -1\ns_nop 1")
                    a(f"{Ln}:")
                    self.ones_init()
            elif c == "w": self.w2_dma()
            elif c == "k": self.kv_dma()
        dq = []
        for n in range(nst, o["PD"]): dq += self.g1_dma_list(n)
        self.g1_addr2(); self.p_addr(); self.cv_addr()
        self.g2_rot(); self.g2_w2f_addr(11)
        self.stamp("iss")
        nload = f"buffer_load_dword v{NV}, off, {R(SDBG)}, 0 sc1"
        p0load = f"buffer_load_dword v156, v157, {R(SWS)}, s76 offen sc1"
        p1load = f"buffer_load_dwordx2 v[158:159], v160, {R(SWS)}, s70 offen sc1"
        W = self.g2_w2f_list(0)
        self.wreg = "v11"
        st = dict(nonce=False, pub={"w2st": "s72", "kvst": "s73"}, w=False)
        def popw(k):
            while k > 0 and W and st["w"]:
                e = W.pop(0); self.emit([(e[0].replace("VR", self.wreg),) + e[1:]]); k -= e[1]
        def events(t):
            if t == o["qn"]: a.vmem(nload, tag="nonce")
            if t == o["poll0"]:
                assert not self.side and "w2st" not in st["pub"]
                a("v_min_u32 v157, 23, v0\nv_lshlrev_b32 v157, 2, v157"); a.vmem(p0load, tag="poll0")
            if t == o["chk0"]:
                self.stamp("c0a"); self.check("poll0", p0load, [156]); self.stamp("chk0"); st["w"] = True
            if t == o["poll1"]:
                assert not self.side and not st["pub"]
                a("v_lshlrev_b32 v160, 3, v0"); a.vmem(p1load, tag="poll1")
            if t == o["chk1"]:
                self.stamp("c1a"); self.check("poll1", p1load, [158, 159]); self.stamp("chk1")
                self.cv_kv_loads()
            if t == o["qssm"]:
                assert not self.side
                self.cv_h_loads()
        def hook(q, pos):
            n = q >> 2
            if pos == "bar":
                for tg in list(st["pub"]):
                    if tg in a.vm and not any(isinstance(x, tuple) and x[1] == tg for x in self.side) and a.vm[tg] >= a.vm[f"st{n+1}"]:
                        if not st["nonce"]:
                            Lc, Lok = a.label("Lnc"), a.label("Lnok")
                            a(f"s_movk_i32 s68, {SPIN}")
                            a.wait_vm("nonce")
                            a(f"{Lc}:\nv_readfirstlane_b32 {NONCE}, v{NV}\ns_cmp_lg_u32 {NONCE}, 0\ns_cbranch_scc1 {Lok}")
                            a(f"s_sub_u32 s68, s68, 1\ns_cbranch_scc1 {Lok}\ns_sleep 1\n{nload}\ns_waitcnt vmcnt(0)\ns_branch {Lc}\n{Lok}:")
                            st["nonce"] = True
                        self.one_lane_store(NV, st["pub"].pop(tg))
                        print(f"publish {tg} at q={q}", file=sys.stderr)
            if pos in ("mid", "bar"):
                if not self.dq: popw(o["wq"])
                events(q)
            if pos == "mid" and q == 39:
                self.cv_special()
        self.g1_loop(hook, dq)
        self.stamp("G1")
        a(f"v_mov_b32 v13, v11\nv_mov_b32 v15, v{NV}")
        self.wreg = "v13"
        side = self.capture(lambda: self.cv_h_write(T=168))
        side += self.capture(self.cv_addr2) + self.capture(self.g2_addr0)
        def fl2():
            a(f"s_lshl_b32 s74, {MT}, 8\ns_lshl3_add_u32 s74, {NT}, s74\ns_lshr_b32 s66, {WV}, 1\ns_lshl_b32 s66, s66, 7\ns_add_u32 s74, s74, s66")
            a(f"s_and_b32 s66, {WV}, 1\ns_lshl2_add_u32 s74, s66, s74\ns_add_u32 s74, s74, {F2}")
            a(f"s_lshl2_add_u32 s75, {MT2}, {WV}\ns_lshl_b32 s75, s75, 5\ns_add_u32 s75, s75, {F2}\nv_and_b32 v16, 7, v0\nv_lshlrev_b32 v16, 2, v16")
        side += self.capture(fl2)
        def ghook(g, pos):
            per = o["wg"]
            if pos in [int(16 * i / per) for i in range(per)]: popw(1)
            events(40 + 16 * g + pos)
        self.g1_finish(side, ghook)
        self.stamp("gelu")
        a.wait_vm("cvkv")
        for z in range(3): a.dsop(f"ds_write_b128 v{CV_TID}, {v(CV_KV+4*z,4)} offset:{L_KV+z*4608}")
        p2load = f"buffer_load_dword v17, v16, {R(SWS)}, s75 offen sc1"
        Wsave = list(W)
        Hrest = []
        def cvhook(odd):
            W[:] = list(Wsave)
            H0 = self.g2_h_list(0); H1 = self.g2_h_list(1) + self.g2_h_list(2)[:6]
            cnt = [0]
            def h(si, mi):
                c = cnt[0]; cnt[0] += 1
                if c % o["wc"] == 1: popw(1)
                if c == o["pub2"]:
                    self.stamp("cva"); a.wait_vm("hst"); self.one_lane_store(15, "s74"); self.stamp("pub2")
                if c == o["poll2"]:
                    a.vmem(p2load, tag="poll2")
                if c == o["chk2"]:
                    popw(99)
                    self.stamp("cvb"); self.check("poll2", p2load, [17]); self.stamp("chk2")
                if c > o["chk2"] and c % o["hc"] == 0:
                    if H0: self.pop(H0, 1)
                    elif c >= 162: self.pop(H1, 1)
                if c == 179:
                    Hrest[:] = H0 + H1 + self.g2_h_list(2)[6:] + self.g2_h_list(3)
            return h
        self.cv_main(hook=cvhook)
        self.stamp("conv")
        AD = self.capture(self.g2_addr)
        AD += [f"s_lshl2_add_u32 s74, s2, {WV}", f"s_lshl2_add_u32 s74, s74, {F3}", f"s_lshl_b32 s75, {NT2}, 9", f"s_add_u32 s75, s75, {F3}",
               "v_lshlrev_b32 v20, 3, v0", "v_mov_b32 v21, v15"]
        p3load = f"buffer_load_dwordx2 v[22:23], v20, {R(SWS)}, s75 offen sc1"
        while any(len(e) > 2 and e[2].startswith("h0_") for e in Hrest):
            self.pop(Hrest, 1)
        self.pop(Hrest, 4)
        def ypoll(at):
            for i in range(0, len(AD), 2):
                at(0, 2 + i // 2, lambda i=i: a("\n".join(AD[i:i + 2])))
            assert 2 + len(AD) // 2 < 55
            n = sum(e[1] for e in Hrest)
            for i in range(n):
                c = 1 + i * o["hg"]
                at(c // 60, c % 60, lambda: self.pop(Hrest, 1))
            def pub():
                a.wait_vm("yst"); self.one_lane_store(21, "s74")
            at(0, 58, pub)
            at(2, 5, lambda: a.vmem(p3load, tag="poll3"))
            at(2, 29, lambda: self.check("poll3", p3load, [22, 23]))
            if self.prof:
                for s_, mi, nm in ((0, 59, "g2s0"), (2, 28, "g2s2a"), (2, 31, "chk3"), (3, 13, "ybar")):
                    at(s_, mi, lambda nm=nm: self.stamp(nm))
        self.g2_main(ypoll)
        self.stamp("g2end")
        if self.prof:
            a(f"s_lshl2_add_u32 s66, s2, {WV}\ns_lshl_b32 s66, s66, 7\ns_add_u32 s66, s66, {WS_SIZE}\ns_mov_b32 s{SWS+2}, {WS_SIZE+131072}")
            a("s_waitcnt vmcnt(0)\ns_memrealtime s[90:91]\ns_waitcnt lgkmcnt(0)")
            a("v_mov_b32 v1, 0")
            for i in range(len(self.names)):
                if i < 9: a(f"v_writelane_b32 v1, s{92+i}, {i}")
                else: a(f"v_accvgpr_read_b32 v2, a{240+i-9}\ns_nop 1\nv_readfirstlane_b32 s67, v2\ns_nop 4\nv_writelane_b32 v1, s67, {i}")
            a("v_writelane_b32 v1, s90, 29\ns_getreg_b32 s67, hwreg(HW_REG_XCC_ID)\nv_writelane_b32 v1, s67, 30\nv_writelane_b32 v1, s101, 31")
            a("v_lshlrev_b32 v2, 2, v0\ns_mov_b64 exec, 0xffffffff")
            a(f"buffer_store_dword v1, v2, {R(SWS)}, s66 offen")
            a.lines.insert(0, "    ; stamps: " + ",".join(self.names))
        self.epilogue()
        d = kern(KN + "_kernel", self); d["sgpr"] = 102
        return build_file([d])

if __name__ == "__main__":
    out = sys.argv[1]
    opt = {}; prof = False
    for x in sys.argv[2:]:
        if x == "prof": prof = True
        else:
            k_, v_ = x.split("=")
            try: opt[k_] = int(v_)
            except ValueError: opt[k_] = v_.replace("+", " ")
    open(out, "w").write(H("f", prof, **opt).build())
```

```python
import sys; sys.path.insert(0, "gen")
import struct, math
import k as K0
import g as G0
from k import *
from g import G, HR, PO, CH, SPIN

F1 = WS_FL; F2 = WS_FL + 4096; F3 = WS_FL + 8192; F0 = WS_FL + 12288
L_X = 0; L_W1 = 65536; L_K = 114688; L_V = 126976; L_SP = 139264; L_T = 151552; L_GW = 155648; L_ON = 157696
K0.L_T = L_T; G0.L_T = L_T; G0.L_GW = L_GW
RK, RV, NV, SHA, SHB, KP, SP, AC, RB = 156, 167, 175, 176, 180, 184, 206, 214, 230
PA, SA, PB, SB, WA, WS, WS2, B1A = 237, 238, 239, 242, 243, 244, 245, 246

class H(G):
    def __init__(self, name, prof=False, **opt):
        super().__init__(name, prof)
        self.o.update(dict(order="0w1k", sr=16, dr0=4, dq0=6, poll0=22, chk0=28, poll1=33, chk1=39, qssm=26, qn=3, wq=2, wg=5, wc=5))
        self.o.update(opt)
    def check(self, tag, load, regs):
        a = self.a
        Lc, Lok = a.label("Lchk"), a.label("Lok")
        a(f"s_movk_i32 s20, {SPIN}")
        a.wait_vm(tag)
        a(f"{Lc}:")
        a(f"v_cmp_ne_u32 vcc, {NONCE}, v{regs[0]}")
        for r in regs[1:]:
            a(f"v_cmp_ne_u32 s[22:23], {NONCE}, v{r}\ns_or_b64 vcc, vcc, s[22:23]")
        a(f"s_nop 1\ns_cbranch_vccz {Lok}")
        a(f"s_sub_u32 s20, s20, 1\ns_cbranch_scc1 {Lok}")
        a("s_sleep 1")
        a(load)
        a(f"s_waitcnt vmcnt(0)\ns_branch {Lc}")
        a(f"{Lok}:")
    def e1(self, t):
        a = self.a
        if callable(t): t(); return
        tag = None
        if isinstance(t, tuple): t, tag = t
        if t.startswith("ds_"): a.dsop(t, tag=tag)
        elif t.startswith("buffer_"): a.vmem(t, tag=tag)
        else: a(t)

    def gw_dma(self):
        a = self.a
        a(f"s_and_b32 s66, {WV}, 1\ns_lshl_b32 s66, s66, 10\ns_add_u32 m0, s66, {L_GW}\ns_lshl_b32 s67, {CH}, 7\ns_add_u32 s66, s66, s67")
        a("v_lshlrev_b32 v1, 4, v0\nv_add_u32 v1, s66, v1\nv_subrev_u32 v3, 1280, v1\nv_min_u32 v1, v1, v3")
        a("s_waitcnt lgkmcnt(0)")
        a.vmem(f"buffer_load_dwordx4 v1, {R(SGW)}, 0 offen lds")
    def w2_dma(self):
        a = self.a
        a(f"s_lshr_b32 s66, s2, 2\ns_mul_i32 s66, s66, 40960\ns_and_b32 s67, s2, 3\ns_mul_i32 s67, s67, 320\ns_add_u32 s66, s66, s67")
        a(f"s_cmp_ge_u32 s2, 192\ns_cselect_b32 s66, 0x80000000, s66\ns_cmp_eq_u32 {WV}, 3\ns_cselect_b32 s69, 0x80000000, s66")
        a(f"s_mul_i32 s67, {WV}, 192\ns_mul_i32 s68, {WV}, 3072\ns_add_u32 m0, s68, {L_SP}")
        for i in range(3):
            a(f"v_add_u32 v1, s67, v0")
            if i: a(f"v_add_u32 v1, {64*i}, v1")
            a(f"v_mul_u32_u24 v2, 3277, v1\nv_lshrrev_b32 v2, 16, v2\nv_mul_u32_u24 v2, 960, v2\nv_lshl_add_u32 v2, v1, 4, v2")
            a(f"v_add_u32 v2, {'s69' if i else 's66'}, v2")
            if i: a("s_add_u32 m0, m0, 1024")
            a.vmem(f"buffer_load_dwordx4 v2, {R(SW2)}, 0 offen {self.o['mw2']} lds")
        a.mark("pw2")
    def kv_dma(self):
        a = self.a; m = self.o["mkv"]
        a("s_movk_i32 s70, 10240")
        a(f"s_mul_i32 s66, {MT2}, 81920\ns_mul_i32 s67, {NT2}, 160\ns_add_u32 s66, s66, s67\ns_lshl_b32 s67, {WV}, 6\ns_lshl_b32 s68, {WV}, 10")
        a("v_bfrev_b32 v46, 1")
        for j in range(3):
            a(f"v_add_u32 v1, s67, v0")
            if j: a(f"v_add_u32 v1, {256*j}, v1")
            a("v_mul_u32_u24 v2, 6394, v1\nv_lshrrev_b32 v2, 19, v2")
            a("v_mul_u32_u24 v3, 82, v2\nv_sub_u32 v3, v1, v3")
            a("v_mul_u32_u24 v40, 205, v3\nv_lshrrev_b32 v40, 11, v40")
            a("v_mul_u32_u24 v40, 1120, v40\nv_lshl_add_u32 v40, v3, 4, v40")
            a("v_mad_u32_u24 v40, v2, s70, v40\nv_add_u32 v40, s66, v40")
            a("v_cmp_gt_u32 vcc, 80, v3\nv_cndmask_b32 v40, v46, v40, vcc")
            a("v_subrev_u32 v41, 3840, v40")
            if j == 2:
                a("v_cmp_gt_u32 vcc, 686, v1\nv_cndmask_b32 v41, v46, v41, vcc\nv_cmp_gt_u32 vcc, 656, v1\nv_cndmask_b32 v40, v46, v40, vcc")
            a(f"s_add_u32 m0, s68, {L_K + 4096*j}")
            a.vmem(f"buffer_load_dwordx4 v41, {R(SK)}, 0 offen {m} lds")
            a(f"s_add_u32 m0, s68, {L_V + 4096*j}")
            a.vmem(f"buffer_load_dwordx4 v40, {R(SV)}, 0 offen {m} lds")
        a(f"s_mul_i32 s66, {NT2}, 640\ns_lshl_b32 s67, {WV}, 7\ns_add_u32 s67, s66, s67\nv_lshrrev_b32 v2, 3, v0\nv_lshlrev_b32 v2, 4, v2")
        a.vmem(f"buffer_load_dwordx4 {v(SHA,4)}, v2, {R(SSH)}, s67 offen")
        a(f"s_lshl_b32 s67, {WV}, 5\ns_add_u32 s67, s66, s67\nv_lshrrev_b32 v2, 5, v0\nv_lshlrev_b32 v2, 4, v2")
        a.vmem(f"buffer_load_dwordx4 {v(SHB,4)}, v2, {R(SSH)}, s67 offen offset:512")
        a(f"s_mul_i32 s66, {WV}, 16\ns_mul_i32 s67, {NT}, 96\nv_add_u32 v{B1A}, s66, v0")
        a(f"v_add_u32 v1, s67, v{B1A}\nv_lshlrev_b32 v1, 1, v1")
        a.vmem(f"buffer_load_ushort v248, v1, {R(SB1)}, 0 offen")
        a.mark("pkv")
    def p_addr(self):
        a = self.a
        a("v_and_b32 v1, 7, v0\nv_lshrrev_b32 v2, 3, v0")
        a(f"s_lshl_b32 s67, {WV}, 5\ns_add_u32 s66, s67, {L_K}")
        a(f"v_mul_u32_u24 v3, 1312, v1\nv_lshl_add_u32 v3, v2, 2, v3\nv_add_u32 v{PA}, s66, v3")
        a(f"s_mul_i32 s68, {NT2}, {80*4096}\ns_lshl_b32 s67, {MT2}, 7\ns_sub_u32 s68, s68, s67\ns_lshl_b32 s67, {WV}, 16\ns_add_u32 s66, s68, s67\ns_add_u32 s66, s66, {WS_KVR+4080}")
        a(f"v_lshlrev_b32 v3, 13, v2\nv_lshlrev_b32 v1, 4, v1\nv_sub_u32 v3, v3, v1\nv_add_u32 v{SA}, s66, v3")
        a("s_movk_i32 s71, 4096")
        a("v_and_b32 v1, 31, v0\nv_lshrrev_b32 v2, 5, v0")
        a(f"s_lshl_b32 s67, {WV}, 14\ns_add_u32 s66, s68, s67\ns_add_u32 s66, s66, {WS_KVR+64*4096+4092}")
        a(f"v_lshlrev_b32 v3, 13, v2\nv_lshlrev_b32 v{SB}, 2, v1\nv_sub_u32 v3, v3, v{SB}\nv_add_u32 v{SB}, s66, v3")
        a(f"s_lshl3_add_u32 s66, {WV}, {L_K+128}\nv_lshl_add_u32 v2, v2, 2, s66")
        for i in range(3):
            if i: a("v_add_u32 v1, 1, v1")
            a(f"v_mul_u32_u24 v3, 320, v1\nv_add_u32 v3, v3, v2\nv_lshrrev_b32 v{PB+i}, 2, v1\nv_lshl_add_u32 v{PB+i}, v{PB+i}, 5, v3")
        a("v_lshrrev_b32 v1, 5, v0\nv_bfe_u32 v2, v0, 2, 3\nv_lshl_add_u32 v1, v1, 4, v2")
        a("v_mul_u32_u24 v1, 320, v1\nv_and_b32 v2, 3, v0\nv_mul_u32_u24 v2, 40, v2")
        a(f"s_and_b32 s68, {WV}, 1\ns_lshr_b32 s69, {WV}, 1\ns_mul_i32 s66, s68, 160\ns_mul_i32 s67, s69, 24\ns_add_u32 s66, s66, s67\ns_add_u32 s66, s66, {L_SP}\nv_add3_u32 v{WA}, v1, v2, s66")
        a(f"s_and_b32 s66, s2, 3\ns_lshl1_add_u32 s68, s66, s68\ns_mul_i32 s66, s68, {48*5120}\ns_lshr_b32 s67, s2, 2")
        a(f"s_lshl_b32 s68, s68, 6\ns_add_u32 s68, s68, s67\ns_lshl1_add_u32 s68, s68, s69\ns_lshl2_add_u32 s72, s68, {F0}")
        a(f"s_mul_i32 s67, s67, 5120\ns_add_u32 s66, s66, s67\ns_mul_i32 s67, s69, 3072\ns_add_u32 s66, s66, s67\ns_add_u32 s66, s66, {WS_W2F}")
        a("s_cmp_ge_u32 s2, 192\ns_cselect_b32 s66, 0x80000000, s66\ns_cmp_eq_u32 s69, 1\ns_cselect_b32 s67, 0x80000000, s66")
        a(f"v_lshlrev_b32 v2, 4, v0\nv_add_u32 v{WS}, s66, v2\nv_add_u32 v{WS2}, s67, v2")
        a(f"s_lshl_b32 s66, {NT2}, 5\ns_add_u32 s66, s66, {MT2}\ns_lshl2_add_u32 s66, s66, {WV}\ns_lshl2_add_u32 s73, s66, {F1}")
        a(f"s_lshl_b32 s66, {NT2}, 9\ns_mul_i32 s67, {WV}, 96\ns_add_u32 s66, s66, s67\ns_add_u32 s76, s66, {F0}")
        a(f"s_lshr_b32 s66, s2, 5\ns_lshl_b32 s66, s66, 9\ns_add_u32 s70, s66, {F1}")
        a(f"v_lshlrev_b32 v{B1A}, 5, v{B1A}\nv_add_u32 v{B1A}, {L_T}, v{B1A}\nv_mov_b32 v249, 0\nv_mov_b32 v250, 0\nv_mov_b32 v251, 0")
    def ones_init(self):
        a = self.a
        a(f"s_cmp_lt_u32 {WV}, 2\ns_cselect_b32 s66, 0x3f803f80, 0\ns_lshl_b32 s67, {WV}, 10\ns_add_u32 s67, s67, {L_ON}")
        for i in range(4): a(f"v_mov_b32 v{44+i}, s66")
        a("v_lshlrev_b32 v1, 4, v0\nv_add_u32 v1, s67, v1")
        a.dsop("ds_write_b128 v1, v[44:47]")
    def g1_addr2(self):
        super().g1_addr2()
        a = self.a
        a(f"v_mov_b32 v1, {L_ON+128}\nv_and_b32 v2, 3, v0\nv_cmp_eq_u32 vcc, 0, v2\nv_cndmask_b32 v40, v40, v1, vcc")
        a(f"v_mov_b32 v1, {L_ON+2048+144}\nv_lshrrev_b32 v2, 2, v0\nv_xor_b32 v2, v2, v0\nv_and_b32 v2, 4, v2\nv_cmp_ne_u32 vcc, 0, v2\nv_cndmask_b32 v40, v40, v1, vcc")
        for s in range(1, 4): a(f"v_xor_b32 v{40+s}, {32*s}, v40")

    def side_w2(self):
        a = self.a; L = []
        for i in range(3):
            L.append(f"ds_read_b64_tr_b16 {v(KP+4*i,2)}, v{WA} offset:{8*i}")
            L.append((f"ds_read_b64_tr_b16 {v(KP+4*i+2,2)}, v{WA} offset:{8*i+2560}", f"wf{i}"))
        L += [None] * 8
        for i in range(3):
            L.append(lambda i=i: a.wait_lg(f"wf{i}"))
            L.append((f"buffer_store_dwordx4 {v(KP+4*i,4)}, v{WS2 if i == 2 else WS}, {R(SWS)}, 0 offen offset:{1024*i} sc1", "w2st"))
        return L
    def side_kv(self):
        a = self.a; L = []
        for i in range(11): L.append((f"ds_read_b32 v{RK+i}, v{PA} offset:{(i>>3)*1312+(i&7)*160}", "pak"))
        def sun(SH):
            for j in range(4):
                for c in range(2):
                    src = SH + 2 * c + (j >> 1)
                    L.append(f"v_and_b32 v{SP+2*j+c}, 0xffff0000, v{src}" if j & 1 else f"v_lshlrev_b32 v{SP+2*j+c}, 16, v{src}")
        def unp(d, s): L.extend([f"v_lshlrev_b32 v{d}, 16, v{s}", f"v_and_b32 v{d+1}, 0xffff0000, v{s}"])
        def conv(n):
            for j in (3, 2, 1, 0):
                for i in range(n):
                    kp = KP + 2 * (i + 3 - j)
                    if j == 3: L.append(f"v_pk_mul_f32 {v(AC+2*i,2)}, {v(kp,2)}, {v(SP+2*j,2)}")
                    else: L.append(f"v_pk_fma_f32 {v(AC+2*i,2)}, {v(kp,2)}, {v(SP+2*j,2)}, {v(AC+2*i,2)}")
        sun(SHA)
        for i in range(8): L.append((f"ds_read_b32 v{RV+i}, v{PA} offset:{L_V-L_K+i*160}", "pav"))
        L.append(lambda: a.wait_lg("pak"))
        for i in range(11): unp(KP + 2 * i, RK + i)
        for i in range(5): L.append(f"ds_read_b32 v{RB+i}, v{PB+(i>>1)} offset:{(i&1)*160}")
        for i in range(2): L.append((f"ds_read_b32 v{RB+5+i}, v{PB} offset:{L_V-L_K+i*160}", "pb"))
        conv(8)
        L.append(lambda: a.wait_lg("pav"))
        for i in range(8): unp(KP + 2 * i, RV + i)
        for i in range(8): L.append(f"v_pk_mul_f32 {v(AC+2*i,2)}, {v(AC+2*i,2)}, {v(KP+2*i,2)}")
        for c in range(2):
            for m in range(4): L.append(f"v_cvt_pk_bf16_f32 v{RK+4*c+m}, v{AC+2*(7-2*m)+c}, v{AC+2*(6-2*m)+c}")
            L.append(f"buffer_store_dwordx4 {v(RK+4*c,4)}, v{SA}, {R(SWS)}, {'s71' if c else '0'} offen sc1")
        sun(SHB)
        L.append(lambda: a.wait_lg("pb"))
        for i in range(5): unp(KP + 2 * i, RB + i)
        for i in range(2): unp(KP + 10 + 2 * i, RB + 5 + i)
        conv(2)
        for i in range(2): L.append(f"v_pk_mul_f32 {v(AC+2*i,2)}, {v(AC+2*i,2)}, {v(KP+10+2*i,2)}")
        for c in range(2): L.append(f"v_cvt_pk_bf16_f32 v{RK+8+c}, v{AC+2+c}, v{AC+c}")
        for c in range(2): L.append((f"buffer_store_dword v{RK+8+c}, v{SB}, {R(SWS)}, {'s71' if c else '0'} offen sc1", "kvst"))
        L.append(f"ds_write_b128 v{B1A}, v[248:251] offset:16")
        return L

    def g1_loop(self, hook, dq):
        a = self.a; o = self.o; PD = o["PD"]
        a.wait_vm("st0", lg=0); a("s_barrier")
        self.stamp("bar0")
        for q in (0, 1):
            L = self.g1_reads(q)
            for i, t in enumerate(L): a.dsop(t, tag=f"rd{q}" if i == len(L) - 1 else None)
        self.dq = dq; side = self.side = []
        pend = {"pw2": self.side_w2, "pkv": self.side_kv}
        def cover(n):
            for t in list(pend):
                if a.vm[t] >= a.vm[f"st{n}"]: side.extend(pend.pop(t)())
        cover(0)
        for q in range(40):
            n, s = q >> 2, q & 3
            fb = 96 + 16 * (q % 3)
            rd = self.g1_reads(q + 2) if q + 2 < 40 else []
            bar = (s == 2 and n + 1 < 10)
            def mf(t):
                c = v(48 + 16 * t, 16) if q else "0"
                a(f"v_mfma_f32_32x32x16_bf16 {v(48+16*t,16)}, {v(fb+4*t,4)}, {v(fb+12,4)}, {c}")
            def cs(t):
                if s: return
                c = "v[32:35]" if (q or t) else "0"
                a(f"v_mfma_f32_16x16x32_bf16 v[32:35], {v(20+4*t,4)}, {v(fb+4*t,4)}, {c}")
            def sq(h):
                c = "v[36:39]" if (q or h) else "0"
                a(f"v_mfma_f32_4x4x4_16b_bf16 v[36:39], {v(fb+12+2*h,2)}, {v(fb+12+2*h,2)}, {c}")
            def st():
                c = "v[44:47]" if q else "0"
                a(f"v_mfma_f32_16x16x32_bf16 v[44:47], {v(144+4*(q%3),4)}, {v(fb+12,4)}, {c}")
            def rds(k):
                for _ in range(k):
                    if rd:
                        t = rd.pop(0); a.dsop(t, tag=f"rd{q+2}" if not rd else None)
            def sd(k):
                for _ in range(k):
                    if side:
                        t = side.pop(0)
                        if t is not None: self.e1(t)
            dr = (o["dr0"] if q < o["dq0"] else 2) // 2
            sr = o["sr"]; s1 = sr // 4
            a.wait_lg(f"rd{q}")
            mf(0)
            if bar:
                self.pop(dq, dr - 1); sd(2 * s1); sq(0)
                mf(1); sd(s1); st(); sd(s1)
                hook(q, "prebar")
                while f"st{n+1}" not in a.vm: self.pop(dq, 1)
                a.wait_vm(f"st{n+1}", lg=0); a("s_barrier")
                if n + PD <= 9: dq += self.g1_dma_list(n + PD)
                rds(4); mf(2); rds(4); self.pop(dq, dr); sq(1)
                cover(n + 1)
                hook(q, "bar")
            else:
                rds(3); self.pop(dq, dr); sd(s1); sq(0); cs(0)
                mf(1); rds(3); self.pop(dq, dr); sd(s1); st(); cs(1); sd(s1)
                hook(q, "mid")
                mf(2); rds(2); sd(sr - 3 * s1); sq(1); cs(2)
            if q == 37:
                self.g1_cs_write()
            if q in (9, 19, 29): self.stamp(f"q{q}")
        assert not dq and not side and not pend
    def g1_stats(self):
        a = self.a
        a("s_mov_b32 s66, 0xaaaaaaaa\ns_mov_b32 s67, s66\ns_mov_b32 s68, 0xcccccccc\ns_mov_b32 s69, s68")
        a("v_cndmask_b32 v36, v36, v37, s[66:67]\nv_cndmask_b32 v38, v38, v39, s[66:67]\nv_cndmask_b32 v36, v36, v38, s[68:69]")
        a("v_mov_b32 v37, v36\nv_mov_b32 v46, v45\nv_permlane32_swap_b32 v36, v37\nv_add_f32 v45, v36, v37")
        inv = "0x3acccccd"
        a(f"v_mul_f32 v44, {inv}, v44\nv_mul_f32 v45, {inv}, v45")
        a("v_fma_f32 v45, -v44, v44, v45\nv_max_f32 v45, 0, v45")
        a("v_cvt_pk_bf16_f32 v45, v45, v46")
        a("v_and_b32 v46, 0xffff0000, v45\nv_lshlrev_b32 v45, 16, v45")
        a("v_add_f32 v45, 0x3727c5ac, v45")
        a("v_mul_f32 v46, 0xbfb8aa3b, v46")
        a("v_cvt_pk_bf16_f32 v45, v45, v45\nv_exp_f32 v46, v46")
        a("v_lshlrev_b32 v45, 16, v45\nv_add_f32 v46, 1.0, v46")
        a("v_sqrt_f32 v45, v45\nv_rcp_f32 v46, v46")
        a("v_cvt_pk_bf16_f32 v36, -v44, v45")
        a("v_cvt_pk_bf16_f32 v46, v46, v46\nv_lshlrev_b32 v46, 16, v46")
        a("v_sub_f32 v45, 1.0, v46\nv_cvt_pk_bf16_f32 v45, v46, v45")

    def build(self):
        a = self.a; o = self.o
        if self.prof: a("s_memrealtime s[100:101]")
        if self.prof: self.stamp("pro")
        self.prologue()
        self.g1_addr(); self.gw_dma()
        nst = 0
        for c in o["order"]:
            if c.isdigit():
                assert int(c) == nst; self.g1_dma(nst); nst += 1
                if nst == 1:
                    self.stamp("iss0")
                    Ln = a.label("Lnp")
                    a(f"s_cmp_lg_u32 s2, 0\ns_cbranch_scc1 {Ln}\ns_cmp_lg_u32 {WV}, 1\ns_cbranch_scc1 {Ln}")
                    a("s_memrealtime s[66:67]\ns_waitcnt lgkmcnt(0)\ns_or_b32 s66, s66, 1\nv_mov_b32 v1, s66\ns_mov_b64 exec, 1")
                    a(f"buffer_store_dword v1, off, {R(SDBG)}, 0 sc1\ns_mov_b64 exec, -1\ns_nop 1")
                    a(f"{Ln}:")
                    self.ones_init()
            elif c == "w": self.w2_dma()
            elif c == "k": self.kv_dma()
        dq = []
        for n in range(nst, o["PD"]): dq += self.g1_dma_list(n)
        self.g1_addr2(); self.p_addr(); self.cv_addr()
        self.g2_rot(); self.g2_w2f_addr(11)
        self.stamp("iss")
        nload = f"buffer_load_dword v{NV}, off, {R(SDBG)}, 0 sc1"
        p0load = f"buffer_load_dword v156, v157, {R(SWS)}, s76 offen sc1"
        p1load = f"buffer_load_dwordx2 v[158:159], v160, {R(SWS)}, s70 offen sc1"
        W = self.g2_w2f_list(0)
        self.wreg = "v11"
        st = dict(nonce=False, pub={"w2st": "s72", "kvst": "s73"}, w=False)
        def popw(k):
            while k > 0 and W and st["w"]:
                e = W.pop(0); self.emit([(e[0].replace("VR", self.wreg),) + e[1:]]); k -= e[1]
        def events(t):
            if t == o["qn"]: a.vmem(nload, tag="nonce")
            if t == o["poll0"]:
                assert not self.side and "w2st" not in st["pub"]
                a("v_min_u32 v157, 23, v0\nv_lshlrev_b32 v157, 2, v157"); a.vmem(p0load, tag="poll0")
            if t == o["chk0"]:
                self.stamp("c0a"); self.check("poll0", p0load, [156]); self.stamp("chk0"); st["w"] = True
            if t == o["poll1"]:
                assert not self.side and not st["pub"]
                a("v_lshlrev_b32 v160, 3, v0"); a.vmem(p1load, tag="poll1")
            if t == o["chk1"]:
                self.stamp("c1a"); self.check("poll1", p1load, [158, 159]); self.stamp("chk1")
                self.cv_kv_loads()
            if t == o["qssm"]:
                assert not self.side
                self.cv_h_loads()
        def hook(q, pos):
            n = q >> 2
            if pos == "bar":
                for tg in list(st["pub"]):
                    if tg in a.vm and not any(isinstance(x, tuple) and x[1] == tg for x in self.side) and a.vm[tg] >= a.vm[f"st{n+1}"]:
                        if not st["nonce"]:
                            Lc, Lok = a.label("Lnc"), a.label("Lnok")
                            a(f"s_movk_i32 s68, {SPIN}")
                            a.wait_vm("nonce")
                            a(f"{Lc}:\nv_readfirstlane_b32 {NONCE}, v{NV}\ns_cmp_lg_u32 {NONCE}, 0\ns_cbranch_scc1 {Lok}")
                            a(f"s_sub_u32 s68, s68, 1\ns_cbranch_scc1 {Lok}\ns_sleep 1\n{nload}\ns_waitcnt vmcnt(0)\ns_branch {Lc}\n{Lok}:")
                            st["nonce"] = True
                        self.one_lane_store(NV, st["pub"].pop(tg))
                        print(f"publish {tg} at q={q}", file=sys.stderr)
            if pos in ("mid", "bar"):
                if not self.dq: popw(o["wq"])
                events(q)
            if pos == "mid" and q == 39:
                self.cv_special()
        self.g1_loop(hook, dq)
        self.stamp("G1")
        a(f"v_mov_b32 v13, v11\nv_mov_b32 v15, v{NV}")
        self.wreg = "v13"
        side = self.capture(lambda: self.cv_h_write(T=168))
        side += self.capture(self.cv_addr2) + self.capture(self.g2_addr0)
        def fl2():
            a(f"s_lshl_b32 s74, {MT}, 8\ns_lshl3_add_u32 s74, {NT}, s74\ns_lshr_b32 s66, {WV}, 1\ns_lshl_b32 s66, s66, 7\ns_add_u32 s74, s74, s66")
            a(f"s_and_b32 s66, {WV}, 1\ns_lshl2_add_u32 s74, s66, s74\ns_add_u32 s74, s74, {F2}")
            a(f"s_lshl2_add_u32 s75, {MT2}, {WV}\ns_lshl_b32 s75, s75, 5\ns_add_u32 s75, s75, {F2}\nv_and_b32 v16, 7, v0\nv_lshlrev_b32 v16, 2, v16")
        side += self.capture(fl2)
        def ghook(g, pos):
            per = o["wg"]
            if pos in [int(16 * i / per) for i in range(per)]: popw(1)
            events(40 + 16 * g + pos)
        self.g1_finish(side, ghook)
        self.stamp("gelu")
        a.wait_vm("cvkv")
        for z in range(3): a.dsop(f"ds_write_b128 v{CV_TID}, {v(CV_KV+4*z,4)} offset:{L_KV+z*4608}")
        p2load = f"buffer_load_dword v17, v16, {R(SWS)}, s75 offen sc1"
        Wsave = list(W)
        Hrest = []
        def cvhook(odd):
            W[:] = list(Wsave)
            H0 = self.g2_h_list(0); H1 = self.g2_h_list(1) + self.g2_h_list(2)[:6]
            cnt = [0]
            def h(si, mi):
                c = cnt[0]; cnt[0] += 1
                if c % o["wc"] == 1: popw(1)
                if c == o["pub2"]:
                    self.stamp("cva"); a.wait_vm("hst"); self.one_lane_store(15, "s74"); self.stamp("pub2")
                if c == o["poll2"]:
                    a.vmem(p2load, tag="poll2")
                if c == o["chk2"]:
                    popw(99)
                    self.stamp("cvb"); self.check("poll2", p2load, [17]); self.stamp("chk2")
                if c > o["chk2"] and c % o["hc"] == 0:
                    if H0: self.pop(H0, 1)
                    elif c >= 162: self.pop(H1, 1)
                if c == 179:
                    Hrest[:] = H0 + H1 + self.g2_h_list(2)[6:] + self.g2_h_list(3)
            return h
        self.cv_main(hook=cvhook)
        self.stamp("conv")
        AD = self.capture(self.g2_addr)
        AD += [f"s_lshl2_add_u32 s74, s2, {WV}", f"s_lshl2_add_u32 s74, s74, {F3}", f"s_lshl_b32 s75, {NT2}, 9", f"s_add_u32 s75, s75, {F3}",
               "v_lshlrev_b32 v20, 3, v0", "v_mov_b32 v21, v15"]
        p3load = f"buffer_load_dwordx2 v[22:23], v20, {R(SWS)}, s75 offen sc1"
        while any(len(e) > 2 and e[2].startswith("h0_") for e in Hrest):
            self.pop(Hrest, 1)
        self.pop(Hrest, 4)
        def ypoll(at):
            for i in range(0, len(AD), 2):
                at(0, 2 + i // 2, lambda i=i: a("\n".join(AD[i:i + 2])))
            assert 2 + len(AD) // 2 < 55
            n = sum(e[1] for e in Hrest)
            for i in range(n):
                c = 1 + i * o["hg"]
                at(c // 60, c % 60, lambda: self.pop(Hrest, 1))
            def pub():
                a.wait_vm("yst"); self.one_lane_store(21, "s74")
            at(0, 58, pub)
            at(2, 5, lambda: a.vmem(p3load, tag="poll3"))
            at(2, 29, lambda: self.check("poll3", p3load, [22, 23]))
            if self.prof:
                for s_, mi, nm in ((0, 59, "g2s0"), (2, 28, "g2s2a"), (2, 31, "chk3"), (3, 13, "ybar")):
                    at(s_, mi, lambda nm=nm: self.stamp(nm))
        self.g2_main(ypoll)
        self.stamp("g2end")
        if self.prof:
            a(f"s_lshl2_add_u32 s66, s2, {WV}\ns_lshl_b32 s66, s66, 7\ns_add_u32 s66, s66, {WS_SIZE}\ns_mov_b32 s{SWS+2}, {WS_SIZE+131072}")
            a("s_waitcnt vmcnt(0)\ns_memrealtime s[90:91]\ns_waitcnt lgkmcnt(0)")
            a("v_mov_b32 v1, 0")
            for i in range(len(self.names)):
                if i < 9: a(f"v_writelane_b32 v1, s{92+i}, {i}")
                else: a(f"v_accvgpr_read_b32 v2, a{240+i-9}\ns_nop 1\nv_readfirstlane_b32 s67, v2\ns_nop 4\nv_writelane_b32 v1, s67, {i}")
            a("v_writelane_b32 v1, s90, 29\ns_getreg_b32 s67, hwreg(HW_REG_XCC_ID)\nv_writelane_b32 v1, s67, 30\nv_writelane_b32 v1, s101, 31")
            a("v_lshlrev_b32 v2, 2, v0\ns_mov_b64 exec, 0xffffffff")
            a(f"buffer_store_dword v1, v2, {R(SWS)}, s66 offen")
            a.lines.insert(0, "    ; stamps: " + ",".join(self.names))
            if o.get("dbg"):
                Ld = a.label("Ldbg")
                a("s_mov_b64 exec, 3\nv_mov_b32 v3, s90\ns_not_b32 s67, s101\nv_writelane_b32 v3, s67, 1")
                a(f"buffer_atomic_umax v3, v2, {R(SDBG)}, 0 offen offset:4")
                a(f"s_cmp_lg_u32 s2, {o['dbg']}\ns_cbranch_scc1 {Ld}\ns_cmp_lg_u32 {WV}, 0\ns_cbranch_scc1 {Ld}")
                sel = ["iss0", "iss", "q9", "q19", "c1a", "G1", "gelu", "cvb", "chk2", "conv", "g2s2a", "chk3", "g2end"]
                a("s_mov_b64 exec, -1\nv_readlane_b32 s68, v1, 0")
                for i, nm in enumerate(sel):
                    a(f"v_readlane_b32 s67, v1, {self.names.index(nm)}\ns_nop 4\ns_sub_u32 s67, s67, s68\ns_nop 1\nv_writelane_b32 v4, s67, {i}")
                a(f"s_mov_b64 exec, 0x1fff\nbuffer_store_dword v4, v2, {R(SDBG)}, 0 offen offset:12\n{Ld}:")
        self.epilogue()
        d = kern(KN + "_kernel", self); d["sgpr"] = 102
        return build_file([d])

if __name__ == "__main__":
    out = sys.argv[1]
    opt = {}; prof = False
    for x in sys.argv[2:]:
        if x == "prof": prof = True
        else:
            k_, v_ = x.split("=")
            try: opt[k_] = int(v_)
            except ValueError: opt[k_] = v_.replace("+", " ")
    open(out, "w").write(H("f", prof, **opt).build())
```

```python
import sys; sys.path.insert(0, "gen")
import struct, math
import k as K0
from k import *

F1 = WS_FL; F2 = WS_FL + 1024; F3 = WS_FL + 1024 + 4096
SPIN = 20000
L_X = 0; L_W1 = 65536; L_K = 114688; L_V = 126976; L_SP = 139264; L_T = 149504; L_GW = 153600
K0.L_SP = L_SP; K0.L_T = L_T
CH = "s3"
def HR(st, kk):
    if st == 0: return 224 + 4 * kk if kk < 8 else 80 + 4 * (kk - 8)
    if st == 1: return 176 + 4 * kk
    if st == 2: return 160 + 4 * kk if kk < 4 else 128 + 4 * (kk - 4)
    return 64 + 4 * kk if kk < 4 else 96 + 4 * (kk - 4)
PO = 8

class G(Gen):
    def __init__(self, name, prof=False, **opt):
        super().__init__(name, True)
        self.prof = prof; self.names = []
        self.o = dict(map="4x2", PD=4, rot=1, rot2=1, mkv="nt", mw2="nt", mssm="nt", mx="", mw1="", mh="sc1", mhs="sc1", mwf="sc1",
                      pub1=1, poll1=4, chk1=5, wq=1, wg=5, wc=5, pub2=40, poll2=70, chk2=100, hc=4, pdma=8, hg=4)
        self.o.update(opt)
    def stamp(self, name):
        if not self.prof: return
        a = self.a
        if name not in self.names: self.names.append(name)
        i = self.names.index(name)
        assert i < 25
        a("s_memtime s[90:91]\ns_waitcnt lgkmcnt(0)")
        if i == 0: a("s_mov_b32 s101, s100")
        if i < 9: a(f"s_mov_b32 s{92+i}, s90")
        else: a(f"v_accvgpr_write_b32 a{240+i-9}, s90")
    def capture(self, fn):
        a = self.a; n = len(a.lines); fn(); L = a.lines[n:]; del a.lines[n:]
        return [l.strip() for l in L]
    def one_lane_store(self, vdata, soff, m="sc1"):
        a = self.a
        a("s_mov_b64 exec, 1")
        a.vmem(f"buffer_store_dword v{vdata}, off, {R(SWS)}, {soff} {m}")
        a("s_mov_b64 exec, -1")
    def check(self, tag, load, regs):
        a = self.a
        Lc, Lok = a.label("Lchk"), a.label("Lok")
        a(f"s_movk_i32 s68, {SPIN}")
        a.wait_vm(tag)
        a(f"{Lc}:")
        a(f"v_cmp_ne_u32 vcc, {NONCE}, v{regs[0]}")
        for r in regs[1:]:
            a(f"v_cmp_ne_u32 s[66:67], {NONCE}, v{r}\ns_or_b64 vcc, vcc, s[66:67]")
        a(f"s_nop 1\ns_cbranch_vccz {Lok}")
        a(f"s_sub_u32 s68, s68, 1\ns_cbranch_scc1 {Lok}")
        a("s_sleep 1")
        a(load)
        a(f"s_waitcnt vmcnt(0)\ns_branch {Lc}")
        a(f"{Lok}:")
    def pop(self, L, k):
        while k > 0 and L:
            e = L.pop(0); self.emit([e]); k -= e[1]

    def prologue(self):
        a = self.a
        a(f"s_cmp_ge_u32 s2, 256\ns_cbranch_scc1 {self.end}")
        T = ((SK, 8, 2621440), (SV, 16, 2621440), (SSH, 24, 5120), (SQ, 0, 2621440), (SW1, 56, 1966080), (SW2, 72, 1966080),
             (SWS, 112, WS_SIZE), (SGW, 88, 1280), (SB1, 64, 3072), (SH, 32, 2621440), (SD, 40, 1280),
             (SO, 96, 2621440), (SDBG, 104, 256), (SB2, 80, 1280))
        for s, off, nb in T: a(f"s_load_dwordx2 s[{s}:{s+1}], s[0:1], {off}")
        a("v_lshrrev_b32 v1, 6, v0\nv_and_b32 v0, 63, v0")
        a(f"v_readfirstlane_b32 {WV}, v1")
        for s, off, nb in T: a(f"s_mov_b32 s{s+2}, {nb}\ns_mov_b32 s{s+3}, 0x00020000")
        a("s_lshr_b32 s68, s2, 3")
        if self.o["map"] == "4x2":
            a("s_lshr_b32 s66, s2, 1\ns_and_b32 s66, s66, 3\ns_and_b32 s67, s2, 1")
            a(f"s_lshr_b32 s69, s68, 3\ns_lshl2_add_u32 {MT}, s66, s69")
            a(f"s_and_b32 s69, s68, 7\ns_lshl3_add_u32 {NT}, s67, s69")
            a(f"s_lshr_b32 s69, s68, 2\ns_lshl3_add_u32 {MT2}, s66, s69")
            a(f"s_and_b32 s69, s68, 3\ns_lshl2_add_u32 {NT2}, s67, s69")
            mul = 3
        else:
            a("s_and_b32 s66, s2, 7")
            a(f"s_lshr_b32 s69, s68, 4\ns_lshl1_add_u32 {MT}, s66, s69\ns_and_b32 {NT}, s68, 15")
            a(f"s_lshr_b32 s69, s68, 3\ns_lshl2_add_u32 {MT2}, s66, s69\ns_and_b32 {NT2}, s68, 7")
            mul = 5
        if self.o["rot"]:
            if mul == 3: a(f"s_mul_i32 s66, {MT}, 3\ns_add_u32 s66, s66, {NT}")
            else: a(f"s_mul_i32 s66, {MT}, 11\ns_lshr_b32 s66, s66, 1\ns_add_u32 s66, s66, {NT}")
            a(f"s_mul_i32 s67, s66, 6554\ns_lshr_b32 s67, s67, 16\ns_mul_i32 s67, s67, 10\ns_sub_u32 {CH}, s66, s67")
        else:
            a(f"s_mov_b32 {CH}, 0")

    def p_dma(self):
        a = self.a; m = self.o["mkv"]
        a(f"s_mul_i32 s66, {MT2}, 81920\ns_mul_i32 s67, {NT2}, 160\ns_add_u32 s66, s66, s67\ns_lshl_b32 s67, {WV}, 6")
        a("v_bfrev_b32 v46, 1")
        for j in range(3):
            a(f"v_add_u32 v1, s67, v0")
            if j: a(f"v_add_u32 v1, {256*j}, v1")
            a("v_mul_u32_u24 v2, 6394, v1\nv_lshrrev_b32 v2, 19, v2")
            a("v_mul_u32_u24 v3, 82, v2\nv_sub_u32 v3, v1, v3")
            a(f"v_mul_u32_u24 v{40+j}, 205, v3\nv_lshrrev_b32 v{40+j}, 11, v{40+j}")
            a(f"v_mul_u32_u24 v{40+j}, 1120, v{40+j}\nv_lshl_add_u32 v{40+j}, v3, 4, v{40+j}")
            a(f"v_mad_u32_u24 v{40+j}, v2, s70, v{40+j}\nv_add_u32 v{40+j}, s66, v{40+j}")
            a(f"v_cmp_gt_u32 vcc, 80, v3\nv_cndmask_b32 v{40+j}, v46, v{40+j}, vcc")
            a(f"v_subrev_u32 v{43+j}, 3840, v{40+j}")
            if j == 2:
                a("v_cmp_gt_u32 vcc, 686, v1\nv_cndmask_b32 v45, v46, v45, vcc\nv_cmp_gt_u32 vcc, 656, v1\nv_cndmask_b32 v42, v46, v42, vcc")
            if j == 0: a(f"s_lshl_b32 s68, {WV}, 10\ns_waitcnt lgkmcnt(0)")
            a(f"s_add_u32 m0, s68, {L_K + 4096*j}")
            a.vmem(f"buffer_load_dwordx4 v{43+j}, {R(SK)}, 0 offen {m} lds")
            a(f"s_add_u32 m0, s68, {L_V + 4096*j}")
            a.vmem(f"buffer_load_dwordx4 v{40+j}, {R(SV)}, 0 offen {m} lds")
        a.mark("pkv")
    def p_addr(self):
        a = self.a
        a("v_and_b32 v1, 7, v0\nv_lshrrev_b32 v2, 3, v0")
        a(f"s_lshl_b32 s67, {WV}, 5\ns_add_u32 s66, s67, {L_K}")
        a("v_mul_u32_u24 v36, 1312, v1\nv_lshl_add_u32 v36, v2, 2, v36\nv_add_u32 v36, s66, v36")
        a(f"s_mul_i32 s66, {NT2}, 640\ns_lshl_b32 s67, {WV}, 7\ns_add_u32 s66, s66, s67")
        a("v_lshlrev_b32 v38, 4, v2\nv_add_u32 v38, s66, v38")
        a(f"s_mul_i32 s66, {NT2}, {80*4096}\ns_lshl_b32 s67, {WV}, 16\ns_add_u32 s66, s66, s67\ns_lshl_b32 s67, {MT2}, 7\ns_sub_u32 s66, s66, s67\ns_add_u32 s66, s66, {WS_KVR+4080}")
        a("v_lshlrev_b32 v39, 13, v2\nv_lshlrev_b32 v1, 4, v1\nv_sub_u32 v39, v39, v1\nv_add_u32 v39, s66, v39")
        a("s_movk_i32 s71, 4096\ns_mov_b32 s72, 262144\ns_mov_b32 s73, 266240")
    def p_item_reads(self, Rb, second, tag):
        a = self.a
        o = 128 if second else 0
        for i in range(11):
            a.dsop(f"ds_read_b32 v{Rb+i}, v36 offset:{(i>>3)*1312+(i&7)*160+o}", tag=tag + "k" if i == 10 else None)
        for i in range(8):
            a.dsop(f"ds_read_b32 v{Rb+11+i}, v36 offset:{L_V-L_K+i*160+o}", tag=tag if i == 7 else None)
    def p_item_compute(self, Rb, Ob, second, tag, D):
        a = self.a
        KP, SP, AC = 96, 118, 126
        cnt = [0]
        def e(s):
            for l in s.split("\n"):
                a(l); cnt[0] += 1
                if cnt[0] % self.o["pdma"] == 0: self.pop(D, 1)
        for j in range(4):
            for c in range(2):
                src = Rb + 20 + 2 * c + (j >> 1)
                if j & 1: e(f"v_and_b32 v{SP+2*j+c}, 0xffff0000, v{src}")
                else: e(f"v_lshlrev_b32 v{SP+2*j+c}, 16, v{src}")
        a.wait_lg(tag + "k")
        for i in range(11):
            e(f"v_lshlrev_b32 v{KP+2*i}, 16, v{Rb+i}\nv_and_b32 v{KP+2*i+1}, 0xffff0000, v{Rb+i}")
        for j in (3, 2, 1, 0):
            for i in range(8):
                kp = KP + 2 * (i + 3 - j)
                if j == 3: e(f"v_pk_mul_f32 {v(AC+2*i,2)}, {v(kp,2)}, {v(SP+2*j,2)}")
                else: e(f"v_pk_fma_f32 {v(AC+2*i,2)}, {v(kp,2)}, {v(SP+2*j,2)}, {v(AC+2*i,2)}")
        a.wait_lg(tag)
        for i in range(8):
            e(f"v_lshlrev_b32 v{KP+2*i}, 16, v{Rb+11+i}\nv_and_b32 v{KP+2*i+1}, 0xffff0000, v{Rb+11+i}")
        for i in range(8):
            e(f"v_pk_mul_f32 {v(AC+2*i,2)}, {v(AC+2*i,2)}, {v(KP+2*i,2)}")
        for c in range(2):
            for m in range(4):
                a(f"v_cvt_pk_bf16_f32 v{Ob+4*c+m}, v{AC+2*(7-2*m)+c}, v{AC+2*(6-2*m)+c}")
            so = (("0", "s71"), ("s72", "s73"))[second][c]
            a.vmem(f"buffer_store_dwordx4 {v(Ob+4*c,4)}, v39, {R(SWS)}, {so} offen sc1")
    def p_w2f_loads(self):
        a = self.a
        a(f"s_lshr_b32 s66, s2, 2\ns_mul_i32 s66, s66, 40960\ns_and_b32 s67, s2, 3\ns_mul_i32 s67, s67, 320\ns_add_u32 s66, s66, s67")
        a(f"s_and_b32 s67, {WV}, 1\ns_mul_i32 s68, s67, 20480\ns_add_u32 s66, s66, s68\ns_mul_i32 s67, s67, 5120\ns_add_u32 s67, s67, {L_SP}")
        for n in range(5):
            a(f"v_add_u32 v1, {64*n}, v0\nv_mul_u32_u24 v2, 3277, v1\nv_lshrrev_b32 v2, 16, v2")
            a(f"v_mul_u32_u24 v2, 960, v2\nv_lshl_add_u32 v{208+n}, v1, 4, v2\ns_add_u32 m0, s67, {1024*n}")
            a.vmem(f"buffer_load_dwordx4 v{208+n}, {R(SW2)}, s66 offen {self.o['mw2']} lds")
    def p_w2f_compute(self):
        a = self.a
        a("v_lshrrev_b32 v1, 5, v0\nv_bfe_u32 v2, v0, 2, 3\nv_lshl_add_u32 v1, v1, 4, v2")
        a("v_mul_u32_u24 v1, 320, v1\nv_and_b32 v2, 3, v0\nv_mul_u32_u24 v2, 40, v2")
        a(f"s_and_b32 s68, {WV}, 1\ns_mul_i32 s66, s68, 160\ns_add_u32 s66, s66, {L_SP}\nv_add3_u32 v1, v1, v2, s66")
        for j in range(5):
            d = 208 + j * 4
            a.dsop(f"ds_read_b64_tr_b16 {v(d,2)}, v1 offset:{8*j}")
            a.dsop(f"ds_read_b64_tr_b16 {v(d+2,2)}, v1 offset:{8*j+2560}", tag=f"w2f{j}")
        a(f"s_and_b32 s66, s2, 3\ns_lshl1_add_u32 s66, s66, s68\ns_mul_i32 s66, s66, {48*5120}\ns_lshr_b32 s67, s2, 2\ns_mul_i32 s67, s67, 5120\ns_add_u32 s66, s66, s67\ns_add_u32 s66, s66, {WS_W2F}")
        a("v_lshlrev_b32 v2, 4, v0\ns_add_u32 s67, s66, 4096")
        for j in range(5):
            d = 208 + j * 4
            a.wait_lg(f"w2f{j}")
            a.vmem(f"buffer_store_dwordx4 {v(d,4)}, v2, {R(SWS)}, {'s67' if j == 4 else 's66'} offen offset:{(j&3)*1024} sc1")
    def gw_dma(self):
        a = self.a
        a(f"s_lshl_b32 s66, {CH}, 7\nv_lshlrev_b32 v1, 4, v0\nv_add_u32 v1, s66, v1\nv_add_u32 v2, 1024, v1")
        for r in (1, 2):
            a(f"v_subrev_u32 v3, 1280, v{r}\nv_min_u32 v{r}, v{r}, v3")
        a(f"s_mov_b32 m0, {L_GW}")
        a.vmem(f"buffer_load_dwordx4 v1, {R(SGW)}, 0 offen lds")
        a(f"s_mov_b32 m0, {L_GW+1024}")
        a.vmem(f"buffer_load_dwordx4 v2, {R(SGW)}, 0 offen lds")

    def phase_p(self, nload):
        a = self.a; o = self.o
        a("s_movk_i32 s70, 10240")
        self.p_dma()
        self.p_addr()
        a.vmem(f"buffer_load_dwordx4 v[164:167], v38, {R(SSH)}, 0 offen")
        a.vmem(f"buffer_load_dwordx4 v[188:191], v38, {R(SSH)}, 0 offen offset:512")
        L1, L23, LJ, Lno = a.label("Lp1"), a.label("Lp23"), a.label("Lpj"), a.label("Lpno")
        a(f"s_cmp_lt_u32 {WV}, 2\ns_cbranch_scc1 {L1}\ns_cmp_ge_u32 s2, 192\ns_cbranch_scc1 {Lno}")
        s0 = a.snap()
        self.p_w2f_loads()
        a(f"s_branch {Lno}\n{L1}:")
        self.gw_dma()
        a(f"{Lno}:")
        a.restore(s0)
        a.mark("pld")
        self.stamp("Pld")
        self.g1_addr(); self.g1_b1()
        self.g1_dma(0)
        D0 = []
        for n in range(1, o["PD"]): D0 += self.g1_dma_list(n)
        self.pop(D0, 4)
        self.cv_addr(); self.g1_addr2()
        a.wait_vm("pld"); a("s_barrier")
        self.stamp("Pbar")
        L0, L2 = a.label("Lq0"), a.label("Lq2")
        self.p_item_reads(144, False, "pa")
        a(f"s_cmp_eq_u32 {WV}, 0\ns_cbranch_scc1 {L0}")
        s0 = a.snap(); lg0 = dict(a.lg); outs = []
        D = list(D0)
        a(f"s_cmp_lt_u32 {WV}, 2\ns_cbranch_scc1 {L2}\ns_cmp_ge_u32 s2, 192\ns_cbranch_scc1 {L2}")
        self.p_w2f_compute()
        a(f"{L2}:")
        a.restore(s0); a.lg = dict(lg0)
        self.p_item_compute(144, 192, False, "pa", D)
        self.pop(D, 99)
        a.vmem(nload, tag="nonce")
        a(f"s_nop 1\ns_branch {LJ}")
        outs.append(a.snap()); a.restore(s0); a.lg = dict(lg0)
        a(f"{L0}:")
        D = list(D0)
        self.p_item_reads(168, True, "pb")
        self.p_item_compute(144, 192, False, "pa", D); self.p_item_compute(168, 200, True, "pb", D)
        self.pop(D, 99)
        a.vmem(nload, tag="nonce")
        outs.append(a.snap())
        a(f"{LJ}:")
        a.merge(outs)

    def g1_addr(self):
        a = self.a
        a(f"s_lshl_b32 s66, {MT}, 2\ns_add_u32 s66, s66, {WV}\ns_mul_i32 s66, s66, {32*1280}")
        a("v_lshrrev_b32 v1, 3, v0\nv_mul_u32_u24 v1, 1280, v1\nv_add_u32 v1, s66, v1")
        a("v_and_b32 v2, 7, v0\nv_lshrrev_b32 v3, 4, v0\nv_xor_b32 v2, v2, v3")
        a("v_lshl_add_u32 v4, v2, 4, v1")
        a(f"v_xor_b32 v2, 4, v2\nv_lshl_add_u32 v5, v2, 4, v1\nv_add_u32 v5, {10240-1024}, v5")
        a(f"v_add_u32 v6, {20480-2048}, v4\nv_add_u32 v7, {20480-2048}, v5")
        a(f"s_mul_i32 s66, {WV}, 192\ns_mul_i32 s67, {NT}, 192")
        for i in range(3):
            a(f"v_add_u32 v1, s66, v0")
            if i: a(f"v_add_u32 v1, {64*i}, v1")
            a("v_mul_u32_u24 v2, 5462, v1\nv_lshrrev_b32 v2, 16, v2")
            a(f"v_mul_u32_u24 v2, {3072-192}, v2\nv_lshl_add_u32 v2, v1, 4, v2\nv_add_u32 v{8+i}, s67, v2")
            if i: a(f"v_subrev_u32 v{8+i}, {1024*i}, v{8+i}")
        a(f"s_lshl_b32 s77, {WV}, 14\ns_mul_i32 s78, {WV}, 3072\ns_add_u32 s78, s78, {L_W1}")
    def g1_addr2(self):
        a = self.a
        a("v_and_b32 v1, 31, v0\nv_lshrrev_b32 v2, 5, v0\nv_bfe_u32 v3, v0, 1, 3\nv_xor_b32 v3, v3, v2")
        a(f"s_lshl_b32 s66, {WV}, 1\nv_xor_b32 v3, s66, v3\nv_lshlrev_b32 v3, 4, v3")
        a("v_lshlrev_b32 v1, 7, v1\nv_add_u32 v1, s77, v1")
        for s in range(4):
            a(f"v_xor_b32 v{12+s}, {32*s}, v3\nv_add_u32 v{12+s}, v{12+s}, v1")
        a(f"v_or_b32 v3, s66, v2\nv_lshlrev_b32 v3, 4, v3\nv_add_u32 v40, {L_GW}, v3")
        for s in range(1, 4): a(f"v_xor_b32 v{40+s}, {32*s}, v40")
        a("v_bfe_u32 v1, v0, 2, 2\nv_lshl_add_u32 v1, v2, 3, v1\nv_mul_u32_u24 v1, 192, v1")
        a("v_bfe_u32 v3, v0, 4, 1\nv_lshl_add_u32 v1, v3, 5, v1\nv_and_b32 v3, 3, v0\nv_lshl_add_u32 v1, v3, 3, v1")
        for s in range(4):
            a(f"s_xor_b32 s66, {WV}, {s}\ns_mul_i32 s66, s66, 3072\ns_add_u32 s66, s66, {L_W1}\nv_add_u32 v{16+s}, s66, v1")
        a("v_and_b32 v1, 15, v0\nv_bfe_u32 v2, v0, 4, 1\nv_sub_u32 v1, v1, v2\nv_mov_b32 v3, 0x3f803f80")
        for t in range(3):
            a(f"v_cmp_eq_u32 vcc, {4*t}, v1\nv_cndmask_b32 v{20+4*t}, 0, v3, vcc")
            for r in range(1, 4): a(f"v_mov_b32 v{20+4*t+r}, v{20+4*t}")
    def g1_dma_list(self, n):
        slot = n % 4; o = self.o
        L = []
        if n: L += [(f"s_add_u32 {CH}, {CH}, 1", 0), (f"s_cmp_eq_u32 {CH}, 10", 0), (f"s_cselect_b32 {CH}, 0, {CH}", 0)]
        L += [(f"s_lshl_b32 s79, {CH}, 7", 0), (f"s_mul_i32 s80, {CH}, 196608", 0)]
        for i in range(4):
            L.append((f"s_add_u32 m0, s77, {L_X + slot*4096}", 0))
            L.append((f"buffer_load_dwordx4 v{4+i}, {R(SQ)}, s79 offen offset:{1024*i} {o['mx']} lds", 1))
        for i in range(3):
            L.append((f"s_add_u32 m0, s78, {slot*12288}", 0))
            L.append((f"buffer_load_dwordx4 v{8+i}, {R(SW1)}, s80 offen offset:{1024*i} {o['mw1']} lds", 1, f"st{n}" if i == 2 else None))
        out = []; last = None
        for e in L:
            if e[0].startswith("s_add_u32 m0"):
                if e[0] == last: continue
                last = e[0]
            out.append(e)
        return out
    def g1_dma(self, n):
        self.emit(self.g1_dma_list(n))
    def g1_reads(self, q):
        n, s = q >> 2, q & 3
        fb = 96 + 16 * (q % 3); slot = n % 4
        L = [f"ds_read_b128 {v(fb+12,4)}, v{12+s} offset:{slot*4096}"]
        L.append(f"ds_read_b128 {v(144+4*(q%3),4)}, v{40+s} offset:{n*128}")
        for t in range(3):
            for h in range(2):
                L.append(f"ds_read_b64_tr_b16 {v(fb+4*t+2*h,2)}, v{16+s} offset:{slot*12288+64*t+768*h}")
        return L
    def g1_loop(self, hook):
        a = self.a; PD = self.o["PD"]
        a("v_mov_b32 v37, 0\nv_mov_b32 v38, 0\nv_mov_b32 v39, 0\ns_mov_b32 s70, 0x3f803f80")
        a.wait_vm("st0", lg=0); a("s_barrier")
        for q in (0, 1):
            L = self.g1_reads(q)
            for i, t in enumerate(L): a.dsop(t, tag=f"rd{q}" if i == len(L) - 1 else None)
        dq = self.dq = []
        for q in range(40):
            n, s = q >> 2, q & 3
            fb = 96 + 16 * (q % 3)
            rd = self.g1_reads(q + 2) if q + 2 < 40 else []
            bar = (s == 2 and n + 1 < 10)
            dots = []
            for i in range(4):
                dots += [f"v_dot2c_f32_bf16 v37, s70, v{fb+12+i}", f"v_dot2c_f32_bf16 v38, v{fb+12+i}, v{fb+12+i}", f"v_dot2c_f32_bf16 v39, v{144+4*(q%3)+i}, v{fb+12+i}"]
            def mf(t):
                c = v(48 + 16 * t, 16) if q else "0"
                a(f"v_mfma_f32_32x32x16_bf16 {v(48+16*t,16)}, {v(fb+4*t,4)}, {v(fb+12,4)}, {c}")
            def cs(t):
                c = "v[32:35]" if (q or t) else "0"
                a(f"v_mfma_f32_16x16x32_bf16 v[32:35], {v(20+4*t,4)}, {v(fb+4*t,4)}, {c}")
            def rds(k):
                for _ in range(k):
                    if rd:
                        t = rd.pop(0); a.dsop(t, tag=f"rd{q+2}" if not rd else None)
            def dt(k):
                for _ in range(k): a(dots.pop(0))
            a.wait_lg(f"rd{q}")
            mf(0)
            if bar:
                dt(6)
                mf(1)
                dt(6)
                hook(q, "prebar")
                a.wait_vm(f"st{n+1}", lg=0); a("s_barrier")
                if n + PD <= 9:
                    assert not dq
                    dq += self.g1_dma_list(n + PD)
                hook(q, "bar")
                rds(4); mf(2); rds(4); self.pop(dq, 1)
            else:
                rds(3); dt(4); self.pop(dq, 1)
                if s == 0: cs(0)
                mf(1); rds(3); dt(4); self.pop(dq, 1)
                if s == 0: cs(1)
                hook(q, "mid")
                mf(2); rds(2); dt(4)
                if s == 0: cs(2)
            if q == 37:
                self.g1_cs_write()
    def g1_stats(self):
        a = self.a
        for r in (37, 38, 39): a(f"v_mov_b32 v{r+3}, v{r}")
        for r in (37, 38, 39): a(f"v_permlane32_swap_b32 v{r+3}, v{r}")
        a("v_add_f32 v44, v37, v40\nv_add_f32 v45, v38, v41\nv_add_f32 v46, v39, v42")
        inv = "0x3acccccd"
        a(f"v_mul_f32 v44, {inv}, v44\nv_mul_f32 v45, {inv}, v45")
        a("v_fma_f32 v45, -v44, v44, v45\nv_max_f32 v45, 0, v45")
        a("v_cvt_pk_bf16_f32 v45, v45, v46")
        a("v_and_b32 v46, 0xffff0000, v45\nv_lshlrev_b32 v45, 16, v45")
        a("v_add_f32 v45, 0x3727c5ac, v45")
        a("v_mul_f32 v46, 0xbfb8aa3b, v46")
        a("v_cvt_pk_bf16_f32 v45, v45, v45\nv_exp_f32 v46, v46")
        a("v_lshlrev_b32 v45, 16, v45\nv_add_f32 v46, 1.0, v46")
        a("v_sqrt_f32 v45, v45\nv_rcp_f32 v46, v46")
        a("v_cvt_pk_bf16_f32 v36, -v44, v45")
        a("v_cvt_pk_bf16_f32 v46, v46, v46\nv_lshlrev_b32 v46, 16, v46")
        a("v_sub_f32 v45, 1.0, v46\nv_cvt_pk_bf16_f32 v45, v46, v45")
    def g1_finish(self, side, ghook):
        a = self.a
        a("v_and_b32 v1, 31, v0\nv_lshrrev_b32 v2, 5, v0\nv_lshlrev_b32 v47, 2, v1\nv_lshlrev_b32 v1, 5, v1\nv_lshl_add_u32 v1, v2, 4, v1")
        a(f"v_add_u32 v1, {L_T}, v1")
        a("v_mov_b32 v3, 0x02020202\nv_mul_lo_u32 v3, v3, v2\nv_add_u32 v3, 0x01000100, v3")
        a("s_waitcnt lgkmcnt(0)\ns_barrier")
        for t in range(3):
            a.dsop(f"ds_read_b128 {v(144+4*t,4)}, v1 offset:{1024*t}", tag=f"T{t}")
        self.g1_stats()
        a("v_perm_b32 v40, v36, v36, v3\nv_and_b32 v38, 0xffff0000, v36")
        a("v_mov_b32 v41, v40\nv_mov_b32 v42, v40\nv_mov_b32 v43, v40\nv_rcp_f32 v36, v38\nv_mov_b32 v39, v38")
        for t in range(3):
            a.wait_lg(f"T{t}")
            a(f"v_mfma_f32_32x32x16_bf16 {v(48+16*t,16)}, {v(144+4*t,4)}, v[40:43], {v(48+16*t,16)}")
        Ls = a.label("Lgs")
        a(f"s_cmp_lg_u32 {NT}, 0\ns_cbranch_scc1 {Ls}")
        s0 = a.snap()
        a(f"s_lshl2_add_u32 s66, {MT}, {WV}\ns_lshl_b32 s66, s66, 7\ns_add_u32 s66, s66, {WS_ST}\ns_mov_b64 exec, 0xffffffff")
        a.vmem(f"buffer_store_dword v45, v47, {R(SWS)}, s66 offen {self.o['mhs']}")
        a(f"s_mov_b64 exec, -1\n{Ls}:")
        a.restore(s0)
        A = -2 * math.sqrt(2 / math.pi) * math.log2(math.e); B = A * 0.044715
        fh = lambda x: "0x%08x" % struct.unpack("<I", struct.pack("<f", x))[0]
        a(f"v_mul_f32 v37, v36, v36\nv_mul_f32 v37, v37, v36\nv_mul_f32 v36, {fh(A)}, v36\nv_mul_f32 v37, {fh(B)}, v37")
        a(f"s_lshl_b32 s66, {MT}, 2\ns_add_u32 s66, s66, {WV}\ns_mul_i32 s66, s66, {2*48*1024}\ns_mul_i32 s67, {NT}, 3072\ns_add_u32 s66, s66, s67\ns_add_u32 s66, s66, {WS_H}")
        a(f"v_bfe_u32 v1, v0, 4, 1\nv_mul_u32_u24 v1, {48*1024}, v1\nv_and_b32 v2, 15, v0\nv_lshl_add_u32 v1, v2, 4, v1")
        a("v_lshrrev_b32 v2, 5, v0\nv_lshl_add_u32 v1, v2, 8, v1\nv_add_u32 v44, s66, v1")
        self.stamp("fin0")
        def sd(k):
            for _ in range(k):
                if side:
                    t = side.pop(0)
                    if callable(t): t()
                    elif t.startswith("ds_"): a.dsop(t)
                    else: a(t)
        for t in range(3):
            for p in range(2):
                P = 48 + 16 * t + 8 * p
                T = 96 + 16 * ((2 * t + p) & 1); O = T + 8
                for i in range(4): a(f"v_pk_mul_f32 {v(T+2*i,2)}, {v(P+2*i,2)}, {v(P+2*i,2)}")
                for i in range(4): a(f"v_pk_fma_f32 {v(T+2*i,2)}, {v(T+2*i,2)}, v[36:37], v[36:37] op_sel:[0,1,0] op_sel_hi:[1,1,0]")
                for i in range(4): a(f"v_pk_mul_f32 {v(T+2*i,2)}, {v(T+2*i,2)}, {v(P+2*i,2)}")
                for i in range(8):
                    a(f"v_exp_f32 v{T+i}, v{T+i}"); sd(2); ghook(2 * t + p, i)
                for i in range(4): a(f"v_pk_fma_f32 {v(T+2*i,2)}, {v(T+2*i,2)}, v[38:39], v[38:39]")
                for i in range(8):
                    a(f"v_rcp_f32 v{T+i}, v{T+i}"); sd(2); ghook(2 * t + p, 8 + i)
                for i in range(4): a(f"v_pk_mul_f32 {v(T+2*i,2)}, {v(T+2*i,2)}, {v(P+2*i,2)}")
                for i in range(4): a(f"v_cvt_pk_bf16_f32 v{O+i}, v{T+2*i}, v{T+2*i+1}")
                a.vmem(f"buffer_store_dwordx4 {v(O,4)}, v44, {R(SWS)}, 0 offen offset:{1024*t+512*p} {self.o['mhs']}")
        a.mark("hst")
        sd(999)

    def cv_h_loads(self):
        a = self.a; m = self.o["mssm"]
        for z in range(3):
            a.vmem(f"buffer_load_dwordx4 {v(CV_H+8*z,4)}, v{CV_TID}, {R(SH)}, s{81+z} offen {m}")
            a.vmem(f"buffer_load_dwordx2 {v(CV_H+8*z+4,2)}, v{CV_TID}, {R(SH)}, s{81+z} offen offset:16 {m}")
        a(f"v_bfe_u32 v1, v0, 3, 2\nv_min_u32 v1, 2, v1\nv_mov_b32 v2, s81\nv_mov_b32 v3, s82")
        a("v_cmp_eq_u32 vcc, 1, v1\nv_cndmask_b32 v2, v2, v3, vcc\nv_mov_b32 v3, s83\nv_cmp_eq_u32 vcc, 2, v1\nv_cndmask_b32 v2, v2, v3, vcc")
        a("v_lshrrev_b32 v3, 11, v2")
        a.vmem(f"buffer_load_dwordx2 {v(CV_SPV+2,2)}, v2, {R(SH)}, 0 offen {m}")
        a.vmem(f"buffer_load_ushort v{CV_SPV}, v3, {R(SD)}, 0 offen", tag="cvh")

    def g2_rot(self):
        a = self.a
        if self.o["rot2"]:
            if self.o["map"] == "4x2": a(f"s_and_b32 s66, {MT2}, 7\ns_mul_i32 s66, s66, 3\ns_lshr_b32 s66, s66, 2")
            else: a(f"s_and_b32 s66, {MT2}, 3\ns_mul_i32 s66, s66, 3\ns_lshr_b32 s66, s66, 1")
            a(f"s_add_u32 s14, {WV}, {NT2}\ns_and_b32 s14, s14, 3")
        else:
            a(f"s_mov_b32 s66, 0\ns_mov_b32 s14, {WV}")
        a(f"s_lshl_b32 s{PO}, s66, 11")
        for i in range(1, 6):
            a(f"s_add_u32 s{PO+i}, s{PO+i-1}, 2048\ns_cmp_eq_u32 s{PO+i}, 12288\ns_cselect_b32 s{PO+i}, 0, s{PO+i}")
    def g2_w2f_list(self, vr):
        L = []
        for i in range(60):
            pr, r = divmod(i, 10)
            if r == 0: L.append((f"s_mul_i32 s84, s{PO+pr}, 5", 0))
            elif r % 4 == 0: L.append(("s_add_u32 s84, s84, 4096", 0))
            L.append((f"buffer_load_dwordx4 {ar(4*i,4)}, VR, {R(SWS)}, s84 offen offset:{(r%4)*1024} {self.o['mwf']}", 1))
        return L
    def g2_addr0(self):
        a = self.a
        a(f"s_mul_i32 s66, {MT2}, {4*49152}\ns_mul_i32 s67, {WV}, 12288\ns_add_u32 s66, s66, s67\ns_add_u32 s66, s66, {WS_H}")
        a("v_lshlrev_b32 v14, 4, v0\nv_add_u32 v14, s66, v14")
        for i in range(4):
            a(f"s_add_u32 s66, s14, {i+1}\ns_and_b32 s66, s66, 3\ns_mul_i32 s{85+i}, s66, 49152")
    def g2_addr(self):
        a = self.a
        OW = "s14"
        a("v_lshlrev_b32 v1, 4, v0")
        for i in range(4):
            a(f"s_add_u32 s66, {OW}, {i+1}\ns_and_b32 s66, s66, 3\ns_mul_i32 s66, s66, 15360")
            a(f"s_add_u32 s66, s66, {L_PT + (2-i)*5120 if i < 3 else L_PT}\nv_add_u32 v{5+i}, s66, v1")
        a("v_lshrrev_b32 v1, 4, v0\nv_mul_u32_u24 v12, 40, v1\nv_mul_u32_u24 v1, 20, v1\nv_bfe_u32 v2, v0, 2, 2\nv_add_u32 v1, v1, v2")
        a(f"v_and_b32 v2, 6, v1\nv_bfe_u32 v3, v0, 1, 1\ns_lshl_b32 s66, {OW}, 1\nv_or_b32 v3, s66, v3\nv_xor_b32 v2, v2, v3")
        a(f"v_lshlrev_b32 v1, 7, v1\nv_lshl_add_u32 v1, v2, 4, v1\nv_and_b32 v2, 1, v0\nv_lshl_add_u32 v1, v2, 3, v1\nv_add_u32 v9, {L_Y}, v1\nv_xor_b32 v4, 64, v9")
        a(f"s_mul_i32 s66, {NT2}, 80\ns_mul_i32 s67, {WV}, 24\ns_add_u32 s66, s66, s67\ns_lshl_b32 s66, s66, 12\ns_lshl_b32 s67, {MT2}, 7\ns_add_u32 s66, s66, s67\ns_add_u32 s66, s66, {WS_YT}")
        a("v_lshrrev_b32 v1, 3, v0\nv_and_b32 v2, 6, v1\nv_and_b32 v3, 7, v0\nv_xor_b32 v2, v2, v3\nv_lshlrev_b32 v1, 12, v1\nv_lshl_add_u32 v1, v2, 4, v1\nv_add_u32 v10, s66, v1")
        a(f"s_lshl2_add_u32 s66, {MT2}, {OW}\ns_lshl_b32 s66, s66, 4\nv_and_b32 v1, 15, v0\nv_add_u32 v1, s66, v1")
        a(f"s_mul_i32 s67, {NT2}, 160\nv_add_u32 v12, s67, v12\nv_mul_u32_u24 v11, 1280, v1\nv_add_u32 v11, v11, v12")
        a(f"v_lshlrev_b32 v13, 2, v1\nv_add_u32 v13, {WS_ST}, v13")
    def g2_h_list(self, i):
        L = []
        for k in range(12):
            if k % 2 == 0: L.append((f"s_add_u32 s89, s{85+i}, s{PO+k//2}", 0))
            L.append((f"buffer_load_dwordx4 {v(HR(i,k),4)}, v14, {R(SWS)}, s89 offen offset:{(k%2)*1024} {self.o['mh']}", 1, f"h{i}_{k}"))
        return L
    def g2_y_list(self):
        Ls = self.a.label("Lys")
        L = [(f"s_mul_i32 s66, {WV}, 3072", 0), (f"s_add_u32 m0, s66, {L_Y}", 0)]
        L.append((f"buffer_load_dwordx4 v10, {R(SWS)}, 0 offen sc1 lds", 1))
        L += [(f"s_add_u32 m0, m0, 1024", 0), ("s_mov_b32 s66, 32768", 0), (f"buffer_load_dwordx4 v10, {R(SWS)}, s66 offen sc1 lds", 1)]
        L += [(f"s_add_u32 m0, m0, 1024", 0), ("s_mov_b32 s66, 65536", 0), (f"buffer_load_dwordx4 v10, {R(SWS)}, s66 offen sc1 lds", 1, "y")]
        return L
    def g2_main(self, ypoll, ypos=(2, 30)):
        a = self.a
        Q, B2, YR, PR, U = 224, 234, 244, 164, 132
        K0.G2Q, K0.G2B2 = Q, B2
        side = {}
        def at(st, mi, f): side.setdefault((st, mi), []).append(f)
        for i in range(3):
            D = 24 + 20 * (i & 1)
            for j in range(5):
                at(i + 1, 4 + j, lambda i=i, j=j, D=D: a.dsop(f"ds_write_b128 v{5+i}, {v(D+4*j,4)} offset:{1024*j}"))
        ypoll(at)
        ml = self.g2_misc_list()
        for n, e in enumerate(ml): at(1, 40 + 2 * n, lambda e=e: self.emit([e]))
        at(ypos[0], ypos[1], lambda: self.emit(self.g2_y_list()))
        def bar():
            a.wait_vm("y", lg=0); a("s_barrier")
        at(3, 12, bar)
        k = 13
        for j in range(5):
            at(3, k, lambda j=j: a.dsop(f"ds_read_b64_tr_b16 {v(YR+2*j,2)}, v{4 if j&1 else 9} offset:{512*j}", tag="yr")); k += 1
        for o in range(3):
            for j in range(5):
                at(3, k, lambda o=o, j=j: a.dsop(f"ds_read_b128 {v(PR+20*o+4*j,4)}, v8 offset:{5120*o+1024*j}", tag=f"pr{o}")); k += 1
        XR = [80 + 2 * i for i in range(8)] + [152, 154]
        def pre(i):
            if i == 0:
                a.wait_vm("misc")
                a("v_lshlrev_b32 v16, 16, v15\nv_and_b32 v18, 0xffff0000, v15\nv_mov_b32 v17, v16\nv_mov_b32 v19, v18")
            a(f"v_lshlrev_b32 v{XR[i]}, 16, v{Q+i}\nv_and_b32 v{XR[i]+1}, 0xffff0000, v{Q+i}\nv_pk_mul_f32 {v(XR[i],2)}, {v(XR[i],2)}, v[16:17]")
        for i in range(8): at(2, 40 + 2 * i, lambda i=i: pre(i))
        for i in range(8, 10): at(3, i - 8, lambda i=i: pre(i))
        for i in range(10): at(3, 2 + i, lambda i=i: a(f"v_lshlrev_b32 v{U+2*i}, 16, v{B2+i}\nv_and_b32 v{U+2*i+1}, 0xffff0000, v{B2+i}"))
        def ymul(i):
            if i == 0: a.wait_lg("yr")
            a(f"v_lshlrev_b32 v22, 16, v{YR+i}\nv_and_b32 v23, 0xffff0000, v{YR+i}\nv_pk_mul_f32 {v(XR[i],2)}, {v(XR[i],2)}, v[22:23]")
        for i in range(10): at(3, 22 + i, lambda i=i: ymul(i))
        def addp(o, i):
            if i == 0: a.wait_lg(f"pr{o}")
            a(f"v_pk_add_f32 {v(U+4*i,2)}, {v(U+4*i,2)}, {v(PR+20*o+4*i,2)}\nv_pk_add_f32 {v(U+4*i+2,2)}, {v(U+4*i+2,2)}, {v(PR+20*o+4*i+2,2)}")
        k = 34
        for o in range(3):
            for i in range(5): at(3, k, lambda o=o, i=i: addp(o, i)); k += 1
        for i in range(5):
            at(3, 50 + i, lambda i=i: a(f"v_pk_fma_f32 {v(U+4*i,2)}, {v(U+4*i,2)}, v[18:19], {v(XR[2*i],2)}\nv_pk_fma_f32 {v(U+4*i+2,2)}, {v(U+4*i+2,2)}, v[18:19], {v(XR[2*i+1],2)}"))
        for st in range(4):
            D = 24 + 20 * (st & 1)
            for kk in range(12):
                a.wait_vm(f"h{st}_{kk}")
                for j in range(5):
                    c = v(D + 4 * j, 4) if kk else "0"
                    a(f"v_mfma_f32_16x16x32_bf16 {v(D+4*j,4)}, {ar((kk*5+j)*4,4)}, {v(HR(st,kk),4)}, {c}")
                    for f in side.pop((st, kk * 5 + j), []): f()
        assert not side, side.keys()
        D = 44
        for i in range(10):
            a(f"v_pk_fma_f32 {v(U+2*i,2)}, {v(D+2*i,2)}, v[18:19], {v(U+2*i,2)}")
            if i in (3, 7, 9):
                for i2 in range(i - (3 if i < 9 else 1), i + 1): a(f"v_cvt_pk_bf16_f32 v{Q+i2}, v{U+2*i2}, v{U+2*i2+1}")
                if i == 3: a.vmem(f"buffer_store_dwordx4 {v(Q,4)}, v11, {R(SO)}, 0 offen")
                if i == 7: a.vmem(f"buffer_store_dwordx4 {v(Q+4,4)}, v11, {R(SO)}, 0 offen offset:16")
        a.vmem(f"buffer_store_dwordx2 {v(Q+8,2)}, v11, {R(SO)}, 0 offen offset:32")

    def build(self):
        a = self.a; o = self.o
        if self.prof: a("s_memrealtime s[100:101]")
        self.prologue()
        self.stamp("pro")
        Ln = a.label("Lnp")
        a(f"s_cmp_lg_u32 s2, 0\ns_cbranch_scc1 {Ln}\ns_cmp_lg_u32 {WV}, 1\ns_cbranch_scc1 {Ln}")
        a("s_memrealtime s[66:67]\ns_waitcnt lgkmcnt(0)\ns_or_b32 s66, s66, 1\nv_mov_b32 v1, s66\ns_mov_b64 exec, 1")
        a(f"buffer_store_dword v1, off, {R(SDBG)}, 0 sc1\ns_mov_b64 exec, -1\ns_nop 1")
        a(f"{Ln}:")
        nload = f"buffer_load_dword v164, off, {R(SDBG)}, 0 sc1"
        self.phase_p(nload)
        self.stamp("P")
        self.g1_b1_store()
        a(f"v_lshlrev_b32 v165, 4, v0\ns_mov_b32 s76, {F1}")
        self.g2_rot(); self.g2_w2f_addr(11)
        p1load = f"buffer_load_dwordx4 v[160:163], v165, {R(SWS)}, s76 offen sc1"
        W = self.g2_w2f_list(0)
        self.wreg = "v11"
        def popw(k):
            while k > 0 and W:
                e = W.pop(0); self.emit([(e[0].replace("VR", self.wreg),) + e[1:]]); k -= e[1]
        def hook(q, pos):
            n = q >> 2
            if pos == "prebar" and n == o["pub1"]:
                Lc, Lok = a.label("Lnc"), a.label("Lnok")
                self.stamp("G1a")
                a(f"s_movk_i32 s68, {SPIN}")
                a.wait_vm("nonce")
                a(f"{Lc}:\nv_readfirstlane_b32 {NONCE}, v164\ns_cmp_lg_u32 {NONCE}, 0\ns_cbranch_scc1 {Lok}")
                a(f"s_sub_u32 s68, s68, 1\ns_cbranch_scc1 {Lok}\ns_sleep 1\n{nload}\ns_waitcnt vmcnt(0)\ns_branch {Lc}\n{Lok}:")
            if pos == "bar" and n == o["pub1"]:
                self.stamp("pub1")
                Ls = a.label("Lsk")
                a(f"s_cmp_lg_u32 {WV}, 0\ns_cbranch_scc1 {Ls}")
                s0 = a.snap()
                a(f"s_lshl2_add_u32 s66, s2, {F1}")
                self.one_lane_store(164, "s66")
                a(f"{Ls}:")
                a.restore(s0)
            if pos == "mid" and q == 4 * o["poll1"] + 5:
                a.vmem(p1load, tag="poll1")
            if pos == "mid" and q == 4 * o["chk1"] + 5:
                self.cv_h_loads()
                self.stamp("G1b")
                self.check("poll1", p1load, [160, 161, 162, 163])
                self.stamp("chk1")
                self.cv_kv_loads()
            if pos in ("mid", "bar") and q > 4 * o["chk1"] + 5 and not self.dq: popw(o["wq"])
            if pos == "mid" and q == 39:
                self.cv_special()
        self.g1_loop(hook)
        self.stamp("G1")
        a("v_mov_b32 v13, v11\nv_mov_b32 v15, v164")
        self.wreg = "v13"
        side = self.capture(lambda: self.cv_h_write(T=168))
        side.append(lambda: a.wait_vm("cvkv"))
        side += [f"ds_write_b128 v{CV_TID}, {v(CV_KV+4*z,4)} offset:{L_KV+z*4608}" for z in range(3)]
        side += self.capture(self.cv_addr2) + self.capture(self.g2_addr0)
        def fl2():
            a(f"s_lshl_b32 s74, {MT}, 8\ns_lshl3_add_u32 s74, {NT}, s74\ns_lshr_b32 s66, {WV}, 1\ns_lshl_b32 s66, s66, 7\ns_add_u32 s74, s74, s66")
            a(f"s_and_b32 s66, {WV}, 1\ns_lshl2_add_u32 s74, s66, s74\ns_add_u32 s74, s74, {F2}")
            a(f"s_lshl_b32 s75, {MT2}, 7\ns_add_u32 s75, s75, {F2}\nv_and_b32 v16, 31, v0\nv_lshlrev_b32 v16, 2, v16")
        side += self.capture(fl2)
        def ghook(g, pos):
            per = o["wg"]
            if pos in [int(16 * i / per) for i in range(per)]: popw(1)
        self.g1_finish(side, ghook)
        self.stamp("gelu")
        p2load = f"buffer_load_dword v17, v16, {R(SWS)}, s75 offen sc1"
        Wsave = list(W)
        Hrest = []
        def cvhook(odd):
            W[:] = list(Wsave)
            H0 = self.g2_h_list(0); H1 = self.g2_h_list(1) + self.g2_h_list(2)[:6]
            cnt = [0]
            def h(si, mi):
                c = cnt[0]; cnt[0] += 1
                if c % o["wc"] == 1: popw(1)
                if c == o["pub2"]:
                    self.stamp("cva"); a.wait_vm("hst"); self.one_lane_store(15, "s74"); self.stamp("pub2")
                if c == o["poll2"]:
                    a.vmem(p2load, tag="poll2")
                if c == o["chk2"]:
                    popw(99)
                    self.stamp("cvb"); self.check("poll2", p2load, [17]); self.stamp("chk2")
                if c > o["chk2"] and c % o["hc"] == 0:
                    if H0: self.pop(H0, 1)
                    elif c >= 162: self.pop(H1, 1)
                if c == 179:
                    Hrest[:] = H0 + H1 + self.g2_h_list(2)[6:] + self.g2_h_list(3)
                    self.stamp("cvm")
            return h
        self.cv_main(hook=cvhook)
        self.stamp("conv")
        AD = self.capture(self.g2_addr)
        AD += [f"s_lshl2_add_u32 s74, s2, {WV}", f"s_lshl2_add_u32 s74, s74, {F3}", f"s_lshl_b32 s75, {NT2}, 9", f"s_add_u32 s75, s75, {F3}",
               "v_lshlrev_b32 v20, 3, v0", "v_mov_b32 v21, v15"]
        p3load = f"buffer_load_dwordx2 v[22:23], v20, {R(SWS)}, s75 offen sc1"
        while Hrest and not any(len(e) > 2 and e[2] == "h1_0" for e in Hrest[:0]) and any(len(e) > 2 and e[2].startswith("h0_") for e in Hrest):
            self.pop(Hrest, 1)
        self.pop(Hrest, 4)
        def ypoll(at):
            for i in range(0, len(AD), 2):
                at(0, 2 + i // 2, lambda i=i: a("\n".join(AD[i:i + 2])))
            assert 2 + len(AD) // 2 < 55
            n = sum(e[1] for e in Hrest)
            for i in range(n):
                c = 1 + i * o["hg"]
                at(c // 60, c % 60, lambda: self.pop(Hrest, 1))
            def pub():
                a.wait_vm("yst"); self.one_lane_store(21, "s74")
            at(0, 58, pub)
            at(2, 5, lambda: a.vmem(p3load, tag="poll3"))
            at(2, 29, lambda: self.check("poll3", p3load, [22, 23]))
            if self.prof:
                for st, mi, nm in ((0, 57, "g2s0"), (0, 59, "pub3"), (1, 59, "g2s1"), (2, 28, "g2s2a"), (2, 31, "chk3"), (3, 11, "g2s3a"), (3, 13, "ybar")):
                    at(st, mi, lambda nm=nm: self.stamp(nm))
        self.g2_main(ypoll)
        self.stamp("g2end")
        if self.prof:
            a(f"s_lshl2_add_u32 s66, s2, {WV}\ns_lshl_b32 s66, s66, 7\ns_add_u32 s66, s66, {WS_SIZE}\ns_mov_b32 s{SWS+2}, {WS_SIZE+131072}")
            a("s_waitcnt vmcnt(0)\ns_memrealtime s[90:91]\ns_waitcnt lgkmcnt(0)")
            a("v_mov_b32 v1, 0")
            for i in range(len(self.names)):
                if i < 9: a(f"v_writelane_b32 v1, s{92+i}, {i}")
                else: a(f"v_accvgpr_read_b32 v2, a{240+i-9}\ns_nop 1\nv_readfirstlane_b32 s67, v2\ns_nop 4\nv_writelane_b32 v1, s67, {i}")
            a("v_writelane_b32 v1, s90, 29\ns_getreg_b32 s67, hwreg(HW_REG_XCC_ID)\nv_writelane_b32 v1, s67, 30\nv_writelane_b32 v1, s101, 31")
            a("v_lshlrev_b32 v2, 2, v0\ns_mov_b64 exec, 0xffffffff")
            a(f"buffer_store_dword v1, v2, {R(SWS)}, s66 offen")
            a.lines.insert(0, "    ; stamps: " + ",".join(self.names))
        self.epilogue()
        d = kern(KN + "_kernel", self); d["sgpr"] = 102
        return build_file([d])

if __name__ == "__main__":
    out = sys.argv[1]
    opt = {}; prof = False
    for x in sys.argv[2:]:
        if x == "prof": prof = True
        else:
            k_, v_ = x.split("=")
            try: opt[k_] = int(v_)
            except ValueError: opt[k_] = v_.replace("+", " ")
    open(out, "w").write(G("f", prof, **opt).build())
```

```python
import sys; sys.path.insert(0, "gen")
import struct, math
import k as K0
import g as G0
from k import *
from g import G, HR, PO, CH, SPIN

F1 = WS_FL; F2 = WS_FL + 4096; F3 = WS_FL + 8192; F0 = WS_FL + 12288
L_X = 0; L_W1 = 65536; L_K = 114688; L_V = 126976; L_SP = 139264; L_T = 151552; L_GW = 155648; L_ON = 157696
K0.L_T = L_T; G0.L_T = L_T; G0.L_GW = L_GW
RK, RV, NV, SHA, SHB, KP, SP, AC, RB = 156, 167, 175, 176, 180, 184, 206, 214, 230
PA, SA, PB, SB, WA, WS, WS2, B1A = 237, 238, 239, 242, 243, 244, 245, 246

class H(G):
    def __init__(self, name, prof=False, **opt):
        super().__init__(name, prof)
        self.o.update(dict(order="0w1k", sr=16, dr0=4, dq0=6, poll0=22, chk0=28, poll1=33, chk1=39, qssm=26, qn=3, wq=2, wg=5, wc=5))
        self.o.update(opt)
    def check(self, tag, load, regs):
        a = self.a
        Lc, Lok = a.label("Lchk"), a.label("Lok")
        a(f"s_movk_i32 s20, {SPIN}")
        a.wait_vm(tag)
        a(f"{Lc}:")
        a(f"v_cmp_ne_u32 vcc, {NONCE}, v{regs[0]}")
        for r in regs[1:]:
            a(f"v_cmp_ne_u32 s[22:23], {NONCE}, v{r}\ns_or_b64 vcc, vcc, s[22:23]")
        a(f"s_nop 1\ns_cbranch_vccz {Lok}")
        a(f"s_sub_u32 s20, s20, 1\ns_cbranch_scc1 {Lok}")
        a("s_sleep 1")
        a(load)
        a(f"s_waitcnt vmcnt(0)\ns_branch {Lc}")
        a(f"{Lok}:")
    def e1(self, t):
        a = self.a
        if callable(t): t(); return
        tag = None
        if isinstance(t, tuple): t, tag = t
        if t.startswith("ds_"): a.dsop(t, tag=tag)
        elif t.startswith("buffer_"): a.vmem(t, tag=tag)
        else: a(t)

    def gw_dma(self):
        a = self.a
        a(f"s_and_b32 s66, {WV}, 1\ns_lshl_b32 s66, s66, 10\ns_add_u32 m0, s66, {L_GW}\ns_lshl_b32 s67, {CH}, 7\ns_add_u32 s66, s66, s67")
        a("v_lshlrev_b32 v1, 4, v0\nv_add_u32 v1, s66, v1\nv_subrev_u32 v3, 1280, v1\nv_min_u32 v1, v1, v3")
        a("s_waitcnt lgkmcnt(0)")
        a.vmem(f"buffer_load_dwordx4 v1, {R(SGW)}, 0 offen lds")
    def w2_dma(self):
        a = self.a
        a(f"s_lshr_b32 s66, s2, 2\ns_mul_i32 s66, s66, 40960\ns_and_b32 s67, s2, 3\ns_mul_i32 s67, s67, 320\ns_add_u32 s66, s66, s67")
        a(f"s_cmp_ge_u32 s2, 192\ns_cselect_b32 s66, 0x80000000, s66\ns_cmp_eq_u32 {WV}, 3\ns_cselect_b32 s69, 0x80000000, s66")
        a(f"s_mul_i32 s67, {WV}, 192\ns_mul_i32 s68, {WV}, 3072\ns_add_u32 m0, s68, {L_SP}")
        for i in range(3):
            a(f"v_add_u32 v1, s67, v0")
            if i: a(f"v_add_u32 v1, {64*i}, v1")
            a(f"v_mul_u32_u24 v2, 3277, v1\nv_lshrrev_b32 v2, 16, v2\nv_mul_u32_u24 v2, 960, v2\nv_lshl_add_u32 v2, v1, 4, v2")
            a(f"v_add_u32 v2, {'s69' if i else 's66'}, v2")
            if i: a("s_add_u32 m0, m0, 1024")
            a.vmem(f"buffer_load_dwordx4 v2, {R(SW2)}, 0 offen {self.o['mw2']} lds")
        a.mark("pw2")
    def kv_dma(self):
        a = self.a; m = self.o["mkv"]
        a("s_movk_i32 s70, 10240")
        a(f"s_mul_i32 s66, {MT2}, 81920\ns_mul_i32 s67, {NT2}, 160\ns_add_u32 s66, s66, s67\ns_lshl_b32 s67, {WV}, 6\ns_lshl_b32 s68, {WV}, 10")
        a("v_bfrev_b32 v46, 1")
        for j in range(3):
            a(f"v_add_u32 v1, s67, v0")
            if j: a(f"v_add_u32 v1, {256*j}, v1")
            a("v_mul_u32_u24 v2, 6394, v1\nv_lshrrev_b32 v2, 19, v2")
            a("v_mul_u32_u24 v3, 82, v2\nv_sub_u32 v3, v1, v3")
            a("v_mul_u32_u24 v40, 205, v3\nv_lshrrev_b32 v40, 11, v40")
            a("v_mul_u32_u24 v40, 1120, v40\nv_lshl_add_u32 v40, v3, 4, v40")
            a("v_mad_u32_u24 v40, v2, s70, v40\nv_add_u32 v40, s66, v40")
            a("v_cmp_gt_u32 vcc, 80, v3\nv_cndmask_b32 v40, v46, v40, vcc")
            a("v_subrev_u32 v41, 3840, v40")
            if j == 2:
                a("v_cmp_gt_u32 vcc, 686, v1\nv_cndmask_b32 v41, v46, v41, vcc\nv_cmp_gt_u32 vcc, 656, v1\nv_cndmask_b32 v40, v46, v40, vcc")
            a(f"s_add_u32 m0, s68, {L_K + 4096*j}")
            a.vmem(f"buffer_load_dwordx4 v41, {R(SK)}, 0 offen {m} lds")
            a(f"s_add_u32 m0, s68, {L_V + 4096*j}")
            a.vmem(f"buffer_load_dwordx4 v40, {R(SV)}, 0 offen {m} lds")
        a(f"s_mul_i32 s66, {NT2}, 640\ns_lshl_b32 s67, {WV}, 7\ns_add_u32 s67, s66, s67\nv_lshrrev_b32 v2, 3, v0\nv_lshlrev_b32 v2, 4, v2")
        a.vmem(f"buffer_load_dwordx4 {v(SHA,4)}, v2, {R(SSH)}, s67 offen")
        a(f"s_lshl_b32 s67, {WV}, 5\ns_add_u32 s67, s66, s67\nv_lshrrev_b32 v2, 5, v0\nv_lshlrev_b32 v2, 4, v2")
        a.vmem(f"buffer_load_dwordx4 {v(SHB,4)}, v2, {R(SSH)}, s67 offen offset:512")
        a(f"s_mul_i32 s66, {WV}, 16\ns_mul_i32 s67, {NT}, 96\nv_add_u32 v{B1A}, s66, v0")
        a(f"v_add_u32 v1, s67, v{B1A}\nv_lshlrev_b32 v1, 1, v1")
        a.vmem(f"buffer_load_ushort v248, v1, {R(SB1)}, 0 offen")
        a.mark("pkv")
    def p_addr(self):
        a = self.a
        a("v_and_b32 v1, 7, v0\nv_lshrrev_b32 v2, 3, v0")
        a(f"s_lshl_b32 s67, {WV}, 5\ns_add_u32 s66, s67, {L_K}")
        a(f"v_mul_u32_u24 v3, 1312, v1\nv_lshl_add_u32 v3, v2, 2, v3\nv_add_u32 v{PA}, s66, v3")
        a(f"s_mul_i32 s68, {NT2}, {80*4096}\ns_lshl_b32 s67, {MT2}, 7\ns_sub_u32 s68, s68, s67\ns_lshl_b32 s67, {WV}, 16\ns_add_u32 s66, s68, s67\ns_add_u32 s66, s66, {WS_KVR+4080}")
        a(f"v_lshlrev_b32 v3, 13, v2\nv_lshlrev_b32 v1, 4, v1\nv_sub_u32 v3, v3, v1\nv_add_u32 v{SA}, s66, v3")
        a("s_movk_i32 s71, 4096")
        a("v_and_b32 v1, 31, v0\nv_lshrrev_b32 v2, 5, v0")
        a(f"s_lshl_b32 s67, {WV}, 14\ns_add_u32 s66, s68, s67\ns_add_u32 s66, s66, {WS_KVR+64*4096+4092}")
        a(f"v_lshlrev_b32 v3, 13, v2\nv_lshlrev_b32 v{SB}, 2, v1\nv_sub_u32 v3, v3, v{SB}\nv_add_u32 v{SB}, s66, v3")
        a(f"s_lshl3_add_u32 s66, {WV}, {L_K+128}\nv_lshl_add_u32 v2, v2, 2, s66")
        for i in range(3):
            if i: a("v_add_u32 v1, 1, v1")
            a(f"v_mul_u32_u24 v3, 320, v1\nv_add_u32 v3, v3, v2\nv_lshrrev_b32 v{PB+i}, 2, v1\nv_lshl_add_u32 v{PB+i}, v{PB+i}, 5, v3")
        a("v_lshrrev_b32 v1, 5, v0\nv_bfe_u32 v2, v0, 2, 3\nv_lshl_add_u32 v1, v1, 4, v2")
        a("v_mul_u32_u24 v1, 320, v1\nv_and_b32 v2, 3, v0\nv_mul_u32_u24 v2, 40, v2")
        a(f"s_and_b32 s68, {WV}, 1\ns_lshr_b32 s69, {WV}, 1\ns_mul_i32 s66, s68, 160\ns_mul_i32 s67, s69, 24\ns_add_u32 s66, s66, s67\ns_add_u32 s66, s66, {L_SP}\nv_add3_u32 v{WA}, v1, v2, s66")
        a(f"s_and_b32 s66, s2, 3\ns_lshl1_add_u32 s68, s66, s68\ns_mul_i32 s66, s68, {48*5120}\ns_lshr_b32 s67, s2, 2")
        a(f"s_lshl_b32 s68, s68, 6\ns_add_u32 s68, s68, s67\ns_lshl1_add_u32 s68, s68, s69\ns_lshl2_add_u32 s72, s68, {F0}")
        a(f"s_mul_i32 s67, s67, 5120\ns_add_u32 s66, s66, s67\ns_mul_i32 s67, s69, 3072\ns_add_u32 s66, s66, s67\ns_add_u32 s66, s66, {WS_W2F}")
        a("s_cmp_ge_u32 s2, 192\ns_cselect_b32 s66, 0x80000000, s66\ns_cmp_eq_u32 s69, 1\ns_cselect_b32 s67, 0x80000000, s66")
        a(f"v_lshlrev_b32 v2, 4, v0\nv_add_u32 v{WS}, s66, v2\nv_add_u32 v{WS2}, s67, v2")
        a(f"s_lshl_b32 s66, {NT2}, 5\ns_add_u32 s66, s66, {MT2}\ns_lshl2_add_u32 s66, s66, {WV}\ns_lshl2_add_u32 s73, s66, {F1}")
        a(f"s_lshl_b32 s66, {NT2}, 9\ns_mul_i32 s67, {WV}, 96\ns_add_u32 s66, s66, s67\ns_add_u32 s76, s66, {F0}")
        a(f"s_lshr_b32 s66, s2, 5\ns_lshl_b32 s66, s66, 9\ns_add_u32 s70, s66, {F1}")
        a(f"v_lshlrev_b32 v{B1A}, 5, v{B1A}\nv_add_u32 v{B1A}, {L_T}, v{B1A}\nv_mov_b32 v249, 0\nv_mov_b32 v250, 0\nv_mov_b32 v251, 0")
    def ones_init(self):
        a = self.a
        a(f"s_cmp_lt_u32 {WV}, 2\ns_cselect_b32 s66, 0x3f803f80, 0\ns_lshl_b32 s67, {WV}, 10\ns_add_u32 s67, s67, {L_ON}")
        for i in range(4): a(f"v_mov_b32 v{44+i}, s66")
        a("v_lshlrev_b32 v1, 4, v0\nv_add_u32 v1, s67, v1")
        a.dsop("ds_write_b128 v1, v[44:47]")
    def g1_addr2(self):
        super().g1_addr2()
        a = self.a
        a(f"v_mov_b32 v1, {L_ON+128}\nv_and_b32 v2, 3, v0\nv_cmp_eq_u32 vcc, 0, v2\nv_cndmask_b32 v40, v40, v1, vcc")
        a(f"v_mov_b32 v1, {L_ON+2048+144}\nv_lshrrev_b32 v2, 2, v0\nv_xor_b32 v2, v2, v0\nv_and_b32 v2, 4, v2\nv_cmp_ne_u32 vcc, 0, v2\nv_cndmask_b32 v40, v40, v1, vcc")
        for s in range(1, 4): a(f"v_xor_b32 v{40+s}, {32*s}, v40")

    def side_w2(self):
        a = self.a; L = []
        for i in range(3):
            L.append(f"ds_read_b64_tr_b16 {v(KP+4*i,2)}, v{WA} offset:{8*i}")
            L.append((f"ds_read_b64_tr_b16 {v(KP+4*i+2,2)}, v{WA} offset:{8*i+2560}", f"wf{i}"))
        L += [None] * 8
        for i in range(3):
            L.append(lambda i=i: a.wait_lg(f"wf{i}"))
            L.append((f"buffer_store_dwordx4 {v(KP+4*i,4)}, v{WS2 if i == 2 else WS}, {R(SWS)}, 0 offen offset:{1024*i} sc1", "w2st"))
        return L
    def side_kv(self):
        a = self.a; L = []
        for i in range(11): L.append((f"ds_read_b32 v{RK+i}, v{PA} offset:{(i>>3)*1312+(i&7)*160}", "pak"))
        def sun(SH):
            for j in range(4):
                for c in range(2):
                    src = SH + 2 * c + (j >> 1)
                    L.append(f"v_and_b32 v{SP+2*j+c}, 0xffff0000, v{src}" if j & 1 else f"v_lshlrev_b32 v{SP+2*j+c}, 16, v{src}")
        def unp(d, s): L.extend([f"v_lshlrev_b32 v{d}, 16, v{s}", f"v_and_b32 v{d+1}, 0xffff0000, v{s}"])
        def conv(n):
            for j in (3, 2, 1, 0):
                for i in range(n):
                    kp = KP + 2 * (i + 3 - j)
                    if j == 3: L.append(f"v_pk_mul_f32 {v(AC+2*i,2)}, {v(kp,2)}, {v(SP+2*j,2)}")
                    else: L.append(f"v_pk_fma_f32 {v(AC+2*i,2)}, {v(kp,2)}, {v(SP+2*j,2)}, {v(AC+2*i,2)}")
        sun(SHA)
        for i in range(8): L.append((f"ds_read_b32 v{RV+i}, v{PA} offset:{L_V-L_K+i*160}", "pav"))
        L.append(lambda: a.wait_lg("pak"))
        for i in range(11): unp(KP + 2 * i, RK + i)
        for i in range(5): L.append(f"ds_read_b32 v{RB+i}, v{PB+(i>>1)} offset:{(i&1)*160}")
        for i in range(2): L.append((f"ds_read_b32 v{RB+5+i}, v{PB} offset:{L_V-L_K+i*160}", "pb"))
        conv(8)
        L.append(lambda: a.wait_lg("pav"))
        for i in range(8): unp(KP + 2 * i, RV + i)
        for i in range(8): L.append(f"v_pk_mul_f32 {v(AC+2*i,2)}, {v(AC+2*i,2)}, {v(KP+2*i,2)}")
        for c in range(2):
            for m in range(4): L.append(f"v_cvt_pk_bf16_f32 v{RK+4*c+m}, v{AC+2*(7-2*m)+c}, v{AC+2*(6-2*m)+c}")
            L.append(f"buffer_store_dwordx4 {v(RK+4*c,4)}, v{SA}, {R(SWS)}, {'s71' if c else '0'} offen sc1")
        sun(SHB)
        L.append(lambda: a.wait_lg("pb"))
        for i in range(5): unp(KP + 2 * i, RB + i)
        for i in range(2): unp(KP + 10 + 2 * i, RB + 5 + i)
        conv(2)
        for i in range(2): L.append(f"v_pk_mul_f32 {v(AC+2*i,2)}, {v(AC+2*i,2)}, {v(KP+10+2*i,2)}")
        for c in range(2): L.append(f"v_cvt_pk_bf16_f32 v{RK+8+c}, v{AC+2+c}, v{AC+c}")
        for c in range(2): L.append((f"buffer_store_dword v{RK+8+c}, v{SB}, {R(SWS)}, {'s71' if c else '0'} offen sc1", "kvst"))
        L.append(f"ds_write_b128 v{B1A}, v[248:251] offset:16")
        return L

    def g1_reads(self, q):
        L = super().g1_reads(q)
        if self.o.get("xrd"): del L[1]
        if self.o.get("xcomp"): L = L[:1]
        if self.o.get("xw"): L = L[:2]
        return L
    def g1_dma_list(self, n):
        L = super().g1_dma_list(n)
        if self.o.get("xdma") and n >= 2:
            L = [e for e in L if not e[1] or len(e) > 2 and e[2]]
        if self.o.get("xdx") and n >= 2:
            L = [e for e in L if not e[1] or "s80" in e[0]]
        return L
    def g1_loop(self, hook, dq):
        a = self.a; o = self.o; PD = o["PD"]
        a.wait_vm("st0", lg=0); a("s_barrier")
        self.stamp("bar0")
        for q in (0, 1):
            L = self.g1_reads(q)
            for i, t in enumerate(L): a.dsop(t, tag=f"rd{q}" if i == len(L) - 1 else None)
        self.dq = dq; side = self.side = []
        pend = {"pw2": self.side_w2, "pkv": self.side_kv}
        if o.get("stop"): pend = {}
        def cover(n):
            for t in list(pend):
                if a.vm[t] >= a.vm[f"st{n}"]: side.extend(pend.pop(t)())
        cover(0)
        for q in range(40):
            n, s = q >> 2, q & 3
            fb = 96 + 16 * (q % 3)
            rd = self.g1_reads(q + 2) if q + 2 < 40 else []
            bar = (s == 2 and n + 1 < 10)
            def mf(t):
                if o.get("xcomp"): return
                c = v(48 + 16 * t, 16) if q else "0"
                a(f"v_mfma_f32_32x32x16_bf16 {v(48+16*t,16)}, {v(fb+4*t,4)}, {v(fb+12,4)}, {c}")
            def cs(t):
                if s: return
                c = "v[32:35]" if (q or t) else "0"
                a(f"v_mfma_f32_16x16x32_bf16 v[32:35], {v(20+4*t,4)}, {v(fb+4*t,4)}, {c}")
            def sq(h):
                if o.get("xsq"): return
                c = "v[36:39]" if (q or h) else "0"
                a(f"v_mfma_f32_4x4x4_16b_bf16 v[36:39], {v(fb+12+2*h,2)}, {v(fb+12+2*h,2)}, {c}")
            def st():
                if o.get("xst"): return
                c = "v[44:47]" if q else "0"
                a(f"v_mfma_f32_16x16x32_bf16 v[44:47], {v(144+4*(q%3),4)}, {v(fb+12,4)}, {c}")
            def rds(k):
                for _ in range(k):
                    if rd:
                        t = rd.pop(0); a.dsop(t, tag=f"rd{q+2}" if not rd else None)
            def sd(k):
                for _ in range(k):
                    if side:
                        t = side.pop(0)
                        if t is not None: self.e1(t)
            dr = (o["dr0"] if q < o["dq0"] else 2) // 2
            sr = o["sr"]; s1 = sr // 4
            a.wait_lg(f"rd{q}")
            mf(0)
            if bar:
                self.pop(dq, dr - 1); sd(2 * s1); sq(0)
                mf(1); sd(s1); st(); sd(s1)
                hook(q, "prebar")
                while f"st{n+1}" not in a.vm: self.pop(dq, 1)
                a.wait_vm(f"st{n+1}", lg=0); a("s_barrier")
                if n + PD <= 9: dq += self.g1_dma_list(n + PD)
                rds(4); mf(2); rds(4); self.pop(dq, dr); sq(1)
                cover(n + 1)
                hook(q, "bar")
            else:
                rds(3); self.pop(dq, dr); sd(s1); sq(0); cs(0)
                mf(1); rds(3); self.pop(dq, dr); sd(s1); st(); cs(1); sd(s1)
                hook(q, "mid")
                mf(2); rds(2); sd(sr - 3 * s1); sq(1); cs(2)
            if q == 37:
                self.g1_cs_write()
            if q in (9, 19) or (o.get("stop") and s == 3): self.stamp(f"q{q}")
        assert not dq and not side and not pend
    def g1_stats(self):
        a = self.a
        a("s_mov_b32 s66, 0xaaaaaaaa\ns_mov_b32 s67, s66\ns_mov_b32 s68, 0xcccccccc\ns_mov_b32 s69, s68")
        a("v_cndmask_b32 v36, v36, v37, s[66:67]\nv_cndmask_b32 v38, v38, v39, s[66:67]\nv_cndmask_b32 v36, v36, v38, s[68:69]")
        a("v_mov_b32 v37, v36\nv_mov_b32 v46, v45\nv_permlane32_swap_b32 v36, v37\nv_add_f32 v45, v36, v37")
        inv = "0x3acccccd"
        a(f"v_mul_f32 v44, {inv}, v44\nv_mul_f32 v45, {inv}, v45")
        a("v_fma_f32 v45, -v44, v44, v45\nv_max_f32 v45, 0, v45")
        a("v_cvt_pk_bf16_f32 v45, v45, v46")
        a("v_and_b32 v46, 0xffff0000, v45\nv_lshlrev_b32 v45, 16, v45")
        a("v_add_f32 v45, 0x3727c5ac, v45")
        a("v_mul_f32 v46, 0xbfb8aa3b, v46")
        a("v_cvt_pk_bf16_f32 v45, v45, v45\nv_exp_f32 v46, v46")
        a("v_lshlrev_b32 v45, 16, v45\nv_add_f32 v46, 1.0, v46")
        a("v_sqrt_f32 v45, v45\nv_rcp_f32 v46, v46")
        a("v_cvt_pk_bf16_f32 v36, -v44, v45")
        a("v_cvt_pk_bf16_f32 v46, v46, v46\nv_lshlrev_b32 v46, 16, v46")
        a("v_sub_f32 v45, 1.0, v46\nv_cvt_pk_bf16_f32 v45, v46, v45")

    def build(self):
        a = self.a; o = self.o
        if self.prof: a("s_memrealtime s[100:101]")
        if self.prof: self.stamp("pro")
        if o.get("pf"):
            a(f"s_cmp_ge_u32 s2, 256\ns_cbranch_scc1 {self.end}")
            a("s_getpc_b64 s[66:67]\nLpc0:")
            if o["pf"] == 1:
                a("v_lshlrev_b32 v1, 7, v0")
            else:
                a("v_lshrrev_b32 v1, 3, v0\ns_bfe_u32 s68, s2, 0x30003\ns_lshl_b32 s68, s68, 5\nv_add_lshl_u32 v1, v1, s68, 7")
            a(f"v_min_u32 v1, {self.end}-Lpc0, v1")
            a.vmem("global_load_dword v48, v1, s[66:67]")
        self.prologue()
        self.g1_addr(); self.gw_dma()
        nst = 0
        for c in o["order"]:
            if c.isdigit():
                assert int(c) == nst; self.g1_dma(nst); nst += 1
                if nst == 1:
                    self.stamp("iss0")
                    Ln = a.label("Lnp")
                    a(f"s_cmp_lg_u32 s2, 0\ns_cbranch_scc1 {Ln}\ns_cmp_lg_u32 {WV}, 1\ns_cbranch_scc1 {Ln}")
                    a("s_memrealtime s[66:67]\ns_waitcnt lgkmcnt(0)\ns_or_b32 s66, s66, 1\nv_mov_b32 v1, s66\ns_mov_b64 exec, 1")
                    a(f"buffer_store_dword v1, off, {R(SDBG)}, 0 sc1\ns_mov_b64 exec, -1\ns_nop 1")
                    a(f"{Ln}:")
                    self.ones_init()
            elif c == "w": self.w2_dma()
            elif c == "k": self.kv_dma()
            elif c == "|": a("s_waitcnt vmcnt(0)"); self.stamp("x%d" % len(self.names))
        dq = []
        for n in range(nst, o["PD"]): dq += self.g1_dma_list(n)
        self.g1_addr2(); self.p_addr(); self.cv_addr()
        self.g2_rot(); self.g2_w2f_addr(11)
        self.stamp("iss")
        nload = f"buffer_load_dword v{NV}, off, {R(SDBG)}, 0 sc1"
        p0load = f"buffer_load_dword v156, v157, {R(SWS)}, s76 offen sc1"
        p1load = f"buffer_load_dwordx2 v[158:159], v160, {R(SWS)}, s70 offen sc1"
        W = self.g2_w2f_list(0)
        self.wreg = "v11"
        st = dict(nonce=False, pub={"w2st": "s72", "kvst": "s73"}, w=False)
        def popw(k):
            while k > 0 and W and st["w"]:
                e = W.pop(0); self.emit([(e[0].replace("VR", self.wreg),) + e[1:]]); k -= e[1]
        def events(t):
            if t == o["qn"]: a.vmem(nload, tag="nonce")
            if t == o["poll0"]:
                assert not self.side and "w2st" not in st["pub"]
                a("v_min_u32 v157, 23, v0\nv_lshlrev_b32 v157, 2, v157"); a.vmem(p0load, tag="poll0")
            if t == o["chk0"]:
                self.stamp("c0a"); self.check("poll0", p0load, [156]); self.stamp("chk0"); st["w"] = True
            if t == o["poll1"]:
                assert not self.side and not st["pub"]
                a("v_lshlrev_b32 v160, 3, v0"); a.vmem(p1load, tag="poll1")
            if t == o["chk1"]:
                self.stamp("c1a"); self.check("poll1", p1load, [158, 159]); self.stamp("chk1")
                self.cv_kv_loads()
            if t == o["qssm"]:
                assert not self.side
                self.cv_h_loads()
        def hook(q, pos):
            n = q >> 2
            if pos == "bar":
                for tg in list(st["pub"]):
                    if tg in a.vm and not any(isinstance(x, tuple) and x[1] == tg for x in self.side) and a.vm[tg] >= a.vm[f"st{n+1}"]:
                        if not st["nonce"]:
                            Lc, Lok = a.label("Lnc"), a.label("Lnok")
                            a(f"s_movk_i32 s68, {SPIN}")
                            a.wait_vm("nonce")
                            a(f"{Lc}:\nv_readfirstlane_b32 {NONCE}, v{NV}\ns_cmp_lg_u32 {NONCE}, 0\ns_cbranch_scc1 {Lok}")
                            a(f"s_sub_u32 s68, s68, 1\ns_cbranch_scc1 {Lok}\ns_sleep 1\n{nload}\ns_waitcnt vmcnt(0)\ns_branch {Lc}\n{Lok}:")
                            st["nonce"] = True
                        self.one_lane_store(NV, st["pub"].pop(tg))
                        print(f"publish {tg} at q={q}", file=sys.stderr)
            if pos in ("mid", "bar"):
                if not self.dq: popw(o["wq"])
                events(q)
            if pos == "mid" and q == 39:
                self.cv_special()
        if o.get("stop"):
            self.g1_loop(lambda q, pos: None, dq)
            self.stamp("G1")
            return self.finish()
        self.g1_loop(hook, dq)
        self.stamp("G1")
        a(f"v_mov_b32 v13, v11\nv_mov_b32 v15, v{NV}")
        self.wreg = "v13"
        side = self.capture(lambda: self.cv_h_write(T=168))
        side += self.capture(self.cv_addr2) + self.capture(self.g2_addr0)
        def fl2():
            a(f"s_lshl_b32 s74, {MT}, 8\ns_lshl3_add_u32 s74, {NT}, s74\ns_lshr_b32 s66, {WV}, 1\ns_lshl_b32 s66, s66, 7\ns_add_u32 s74, s74, s66")
            a(f"s_and_b32 s66, {WV}, 1\ns_lshl2_add_u32 s74, s66, s74\ns_add_u32 s74, s74, {F2}")
            a(f"s_lshl2_add_u32 s75, {MT2}, {WV}\ns_lshl_b32 s75, s75, 5\ns_add_u32 s75, s75, {F2}\nv_and_b32 v16, 7, v0\nv_lshlrev_b32 v16, 2, v16")
        side += self.capture(fl2)
        def ghook(g, pos):
            per = o["wg"]
            if pos in [int(16 * i / per) for i in range(per)]: popw(1)
            events(40 + 16 * g + pos)
        self.g1_finish(side, ghook)
        self.stamp("gelu")
        a.wait_vm("cvkv")
        for z in range(3): a.dsop(f"ds_write_b128 v{CV_TID}, {v(CV_KV+4*z,4)} offset:{L_KV+z*4608}")
        p2load = f"buffer_load_dword v17, v16, {R(SWS)}, s75 offen sc1"
        Wsave = list(W)
        Hrest = []
        def cvhook(odd):
            W[:] = list(Wsave)
            H0 = self.g2_h_list(0); H1 = self.g2_h_list(1) + self.g2_h_list(2)[:6]
            cnt = [0]
            def h(si, mi):
                c = cnt[0]; cnt[0] += 1
                if c % o["wc"] == 1: popw(1)
                if c == o["pub2"]:
                    self.stamp("cva"); a.wait_vm("hst"); self.one_lane_store(15, "s74", o["mhs"]); self.stamp("pub2")
                if c == o["poll2"]:
                    a.vmem(p2load, tag="poll2")
                if c == o["chk2"]:
                    popw(99)
                    self.stamp("cvb"); self.check("poll2", p2load, [17]); self.stamp("chk2")
                if c > o["chk2"] and c % o["hc"] == 0:
                    if H0: self.pop(H0, 1)
                    elif c >= 162: self.pop(H1, 1)
                if c == 179:
                    Hrest[:] = H0 + H1 + self.g2_h_list(2)[6:] + self.g2_h_list(3)
            return h
        self.cv_main(hook=cvhook)
        self.stamp("conv")
        AD = self.capture(self.g2_addr)
        AD += [f"s_lshl2_add_u32 s74, s2, {WV}", f"s_lshl2_add_u32 s74, s74, {F3}", f"s_lshl_b32 s75, {NT2}, 9", f"s_add_u32 s75, s75, {F3}",
               "v_lshlrev_b32 v20, 3, v0", "v_mov_b32 v21, v15"]
        p3load = f"buffer_load_dwordx2 v[22:23], v20, {R(SWS)}, s75 offen sc1"
        while any(len(e) > 2 and e[2].startswith("h0_") for e in Hrest):
            self.pop(Hrest, 1)
        self.pop(Hrest, 4)
        def ypoll(at):
            for i in range(0, len(AD), 2):
                at(0, 2 + i // 2, lambda i=i: a("\n".join(AD[i:i + 2])))
            assert 2 + len(AD) // 2 < 55
            n = sum(e[1] for e in Hrest)
            for i in range(n):
                c = 1 + i * o["hg"]
                at(c // 60, c % 60, lambda: self.pop(Hrest, 1))
            def pub():
                a.wait_vm("yst"); self.one_lane_store(21, "s74")
            at(0, 58, pub)
            at(2, 5, lambda: a.vmem(p3load, tag="poll3"))
            at(2, 29, lambda: self.check("poll3", p3load, [22, 23]))
            if self.prof:
                for s_, mi, nm in ((0, 59, "g2s0"), (2, 28, "g2s2a"), (2, 31, "chk3"), (3, 13, "ybar")):
                    at(s_, mi, lambda nm=nm: self.stamp(nm))
        self.g2_main(ypoll)
        self.stamp("g2end")
        return self.finish()
    def finish(self):
        a = self.a; o = self.o
        if self.prof:
            a(f"s_lshl2_add_u32 s66, s2, {WV}\ns_lshl_b32 s66, s66, 7\ns_add_u32 s66, s66, {WS_SIZE}\ns_mov_b32 s{SWS+2}, {WS_SIZE+131072}")
            a("s_waitcnt vmcnt(0)\ns_memrealtime s[90:91]\ns_waitcnt lgkmcnt(0)")
            a("v_mov_b32 v1, 0")
            for i in range(len(self.names)):
                if i < 9: a(f"v_writelane_b32 v1, s{92+i}, {i}")
                else: a(f"v_accvgpr_read_b32 v2, a{240+i-9}\ns_nop 1\nv_readfirstlane_b32 s67, v2\ns_nop 4\nv_writelane_b32 v1, s67, {i}")
            a("v_writelane_b32 v1, s90, 29\ns_getreg_b32 s67, hwreg(HW_REG_XCC_ID)\nv_writelane_b32 v1, s67, 30\nv_writelane_b32 v1, s101, 31")
            a("v_lshlrev_b32 v2, 2, v0\ns_mov_b64 exec, 0xffffffff")
            a(f"buffer_store_dword v1, v2, {R(SWS)}, s66 offen")
            a.lines.insert(0, "    ; stamps: " + ",".join(self.names))
            if o.get("dbg"):
                Ld = a.label("Ldbg")
                a("s_mov_b64 exec, 3\nv_mov_b32 v3, s90\ns_not_b32 s67, s101\nv_writelane_b32 v3, s67, 1")
                a(f"buffer_atomic_umax v3, v2, {R(SDBG)}, 0 offen offset:4")
                a(f"s_cmp_lg_u32 s2, {o['dbg']}\ns_cbranch_scc1 {Ld}\ns_cmp_lg_u32 {WV}, 0\ns_cbranch_scc1 {Ld}")
                sel = ["iss0", "iss", "q9", "q19", "c1a", "G1", "gelu", "cvb", "chk2", "conv", "g2s2a", "chk3", "g2end"]
                a("s_mov_b64 exec, -1\nv_readlane_b32 s68, v1, 0")
                for i, nm in enumerate(sel):
                    a(f"v_readlane_b32 s67, v1, {self.names.index(nm)}\ns_nop 4\ns_sub_u32 s67, s67, s68\ns_nop 1\nv_writelane_b32 v4, s67, {i}")
                a(f"s_mov_b64 exec, 0x1fff\nbuffer_store_dword v4, v2, {R(SDBG)}, 0 offen offset:12\n{Ld}:")
        self.epilogue()
        d = kern(KN + "_kernel", self); d["sgpr"] = 102
        return build_file([d])

if __name__ == "__main__":
    out = sys.argv[1]
    opt = {}; prof = False
    for x in sys.argv[2:]:
        if x == "prof": prof = True
        else:
            k_, v_ = x.split("=")
            try: opt[k_] = int(v_)
            except ValueError: opt[k_] = v_.replace("+", " ")
    open(out, "w").write(H("f", prof, **opt).build())
```

```python
import sys; sys.path.insert(0, "gen")
import struct, math
import k as K0
import g as G0
import h as H0
from k import *
from g import G, PO, CH, SPIN
from h import H

FP = 0x280000; F3 = 0x2A0000; F2 = WS_FL + 16384; FS = 7
L_X = 0; L_W1 = 65536; L_K = 114688; KVD = 9504; T2D = 17952; L_T = 151552; L_GW = 155648
L_HS = 101632; L_KV = 32768; KVP = 5120; L_PXM = 0; L_PXC = 49152; L_PT = 65536; L_Y = 126976
RK, RV, SHR, KP, SP, AC, OUT = 48, 59, 68, 72, 94, 102, 118
RK2, RV2, SH2, OUT2 = 126, 137, 148, 48
PA, SA, SA2 = 152, 153, 154
WD, WA0, WA1, WS0, WS1 = 126, 138, 139, 140, 141
B1V, B1A = 156, 160
CH_, CT_, SPV, SPA, FXA, FXV, TID, HW = 164, 188, 200, 204, 205, 206, 207, 208
PL0, PL1, PLX, PLA = 210, 211, 212, 213
PUBA, PUBV = 232, 233
PFA, PFD = 216, 218
SQA = 220
NV, WF, AM, AM2, BM, ACC, AC2, BC, PXW, PXR, PCR, YM, YC, HST, HLD, P2A, P2V, GSA = range(236, 254)
PW0, PW1, PW2, PRD, YT0, YT1, YD, QO, GA, P3A = 238, 239, 240, 241, 242, 243, 244, 254, 246, 249
B2A = 255; B2 = 144
P3V = 64
DM, DC = 160, 192
LOC = "s76"
def HR(st, kk):
    if st == 0: return 48 + 4 * kk
    if st == 1: return 4 + 4 * kk if kk < 6 else 208 + 4 * (kk - 6)
    return 96 + 48 * (st - 2) + 4 * kk
def DR(st, j):
    if st & 1 == 0: return 28 + 4 * j
    return 192 + 4 * j if j < 4 else 232

class J(H):
    def __init__(self, name, prof=False, **opt):
        super().__init__(name, prof)
        self.o.update(dict(map="8x1", pf=2, order="kjg01P", sr=9, dr0=4, dq0=6, qssm=8, qhs=16, poll=19, chkx=25, chk1=27, chk0=28, wq=2,
                           wc=4, dpub=20, dpoll=176, pub3=(1, 20), poll3=(2, 40), chk3=(3, 5), ybar=(3, 40), xq=(2, 0), pb=30, pb3=16, hg=2, mhs="", loc=1, g0=28, sqr=2, tol=4, pfm=1, pfx=1920, pf2=0, dw=0, sl=6, wc1=2, nost="c1a,fbar,q1,q3,bar0,chk1,Pbar", mx="nt", pfq=29, my="sc1", mp="sc1"))
        self.o.update(opt)

    def stamp(self, name):
        if name in self.o["nost"].split(","): return
        super().stamp(name)
    def checkp(self, tag, load, r):
        a = self.a
        Lc, Lok = a.label("Lchk"), a.label("Lok")
        a(f"s_movk_i32 s20, {SPIN}")
        a.wait_vm(tag)
        a(f"{Lc}:\nv_xor_b32 v{PLX}, {NONCE}, v{r}\nv_cmp_lt_u32 vcc, 15, v{PLX}\ns_nop 1\ns_cbranch_vccz {Lok}")
        a(f"s_sub_u32 s20, s20, 1\ns_cbranch_scc1 {Lok}\ns_sleep 1\n{load}\ns_waitcnt vmcnt(0)\ns_branch {Lc}\n{Lok}:")
    def cap(self, fn):
        L = self.capture(fn); out = []; i = 0
        while i < len(L):
            j = i
            if L[i].startswith("s_cmp"):
                k = i + 1
                while k < len(L) and (L[k].startswith(("s_cselect", "s_mov", "v_")) ):
                    if L[k].startswith("s_cselect"): j = k
                    k += 1
            elif L[i].startswith("v_cmp") and "vcc" in L[i]:
                k = i + 1
                while k < len(L) and not L[k].startswith("v_cmp"):
                    if L[k].startswith("v_cndmask") and "vcc" in L[k]: j = k
                    k += 1
            out.append("\n".join(L[i:j + 1])); i = j + 1
        return out
    def tile(self, t, cb, tb):
        self.a(f"s_mul_i32 {tb}, {t}, 6554\ns_lshr_b32 {tb}, {tb}, 16\ns_mul_i32 {cb}, {tb}, 10\ns_sub_u32 {cb}, {t}, {cb}")
    def kv_dma(self, cb, tb, D, sh, first):
        a = self.a; m = self.o["mkv"]
        if first:
            a("v_lshrrev_b32 v2, 3, v0\nv_mul_u32_u24 v38, 1280, v2\nv_and_b32 v3, 7, v0\nv_lshl_add_u32 v38, v3, 4, v38\nv_lshlrev_b32 v39, 4, v2")
            a(f"s_movk_i32 s72, 10240\ns_movk_i32 s73, 6400\ns_movk_i32 s74, 16640\ns_cmp_eq_u32 {WV}, 3\ns_cselect_b32 s86, 0xffffff, 0\ns_mov_b32 s87, 0")
            a(f"s_mul_i32 s75, {WV}, 2112")
        a(f"s_lshl2_add_u32 s66, {tb}, {WV}\ns_mul_i32 s66, s66, 20480\ns_lshl_b32 s67, {cb}, 7\ns_add_u32 s66, s66, s67")
        a("v_add_u32 v1, s66, v38\nv_subrev_u32 v2, 3840, v1")
        a(f"s_add_u32 m0, s75, {L_K+D}")
        self.kwait()
        a.vmem(f"buffer_load_dwordx4 v2, {R(SK)}, 0 offen {m} lds")
        a(f"s_add_u32 m0, s75, {L_K+D+KVD}")
        a.vmem(f"buffer_load_dwordx4 v1, {R(SV)}, 0 offen {m} lds")
        a(f"s_add_u32 m0, s75, {L_K+D+1056}")
        a.vmem(f"buffer_load_dwordx4 v1, {R(SK)}, s73 offen {m} lds")
        a(f"s_add_u32 m0, s75, {L_K+D+KVD+1056}")
        a.vmem(f"buffer_load_dwordx4 v1, {R(SV)}, s72 offen {m} lds")
        a(f"s_mov_b32 m0, {L_K+D+8448}\ns_mov_b64 exec, s[86:87]")
        a.vmem(f"buffer_load_dwordx4 v1, {R(SK)}, s74 offen {m} lds")
        a(f"s_mov_b64 exec, -1\ns_lshl2_add_u32 s66, {cb}, {WV}\ns_lshl_b32 s66, s66, 7")
        a.vmem(f"buffer_load_dwordx4 {v(sh,4)}, v39, {R(SSH)}, s66 offen")
    def kwait(self):
        if not getattr(self, "kw", False): self.a("s_waitcnt lgkmcnt(0)"); self.kw = True
    def w2_dma(self):
        a = self.a; m = self.o["mw2"]
        a("s_lshr_b32 s66, s2, 1\ns_lshl_b32 s66, s66, 2\ns_and_b32 s67, s2, 1\ns_add_u32 s66, s66, s67\ns_mul_i32 s66, s66, 5120")
        a(f"s_lshl_b32 s67, {WV}, 10\ns_add_u32 s66, s66, s67\ns_add_u32 m0, s67, {L_K+T2D}\nv_lshlrev_b32 v1, 4, v0")
        self.kwait()
        a.vmem(f"buffer_load_dwordx4 v1, {R(SW2)}, s66 offen {m} lds")
        a(f"s_cmp_eq_u32 {WV}, 0\ns_cselect_b32 s68, 0, 5120\ns_add_u32 s68, s66, s68\ns_add_u32 s68, s68, 4096\ns_add_u32 m0, m0, 4096")
        a.vmem(f"buffer_load_dwordx4 v1, {R(SW2)}, s68 offen {m} lds")
        a(f"s_cmp_lt_u32 {WV}, 2\ns_cselect_b64 exec, -1, 0\ns_cselect_b32 s68, 13312, 0\ns_add_u32 s68, s66, s68\ns_add_u32 m0, m0, 4096")
        a.vmem(f"buffer_load_dwordx4 v1, {R(SW2)}, s68 offen {m} lds")
        a("s_mov_b64 exec, -1")
    def job2_dma(self):
        a = self.a
        L2, LJ = a.label("Lj2"), a.label("Ljj")
        kw = getattr(self, "kw", False)
        a(f"s_cmp_ge_u32 s2, 192\ns_cbranch_scc1 {L2}")
        s0 = a.snap()
        self.w2_dma()
        a(f"s_branch {LJ}\n{L2}:")
        s1 = a.snap(); a.restore(s0); self.kw = kw
        a("s_add_u32 s66, s2, 64")
        self.tile("s66", "s84", "s85")
        self.kv_dma("s84", "s85", T2D, SH2, False)
        a(f"{LJ}:")
        a.merge([s1, a.snap()])
    def gb_dma(self):
        a = self.a
        a(f"s_and_b32 s66, {WV}, 1\ns_lshl_b32 s66, s66, 10\ns_add_u32 m0, s66, {L_GW}\ns_lshl_b32 s67, {CH}, 7\ns_add_u32 s66, s66, s67")
        a("v_lshlrev_b32 v1, 4, v0\nv_add_u32 v1, s66, v1\nv_subrev_u32 v3, 1280, v1\nv_min_u32 v1, v1, v3")
        self.kwait()
        a.vmem(f"buffer_load_dwordx4 v1, {R(SGW)}, 0 offen lds")
        a(f"s_lshl_b32 s66, {WV}, 4\ns_mul_i32 s67, {NT}, 96\nv_add_u32 v{B1A}, s66, v0")
        a(f"v_add_lshl_u32 v1, s67, v{B1A}, 1")
        a.vmem(f"buffer_load_ushort v{B1V}, v1, {R(SB1)}, 0 offen")
    def pfl(self, va, srd, so, m=""):
        if self.o["pfm"]: self.a.vmem(f"buffer_load_dwordx2 v[{PFD}:{PFD+1}], v{va}, {R(srd)}, {so} offen offset:60 {m}")
        else: self.a.vmem(f"buffer_load_dword v{PFD}, v{va}, {R(srd)}, {so} offen {m}")
    def pf_w1(self, j):
        a = self.a
        a(f"s_lshr_b32 s66, s2, 3\ns_lshl2_add_u32 s66, s66, {WV}\ns_mul_i32 s66, s66, 60\ns_and_b32 s67, s2, 7\ns_mul_i32 s67, s67, {self.o['pfx']}\ns_add_u32 s66, s66, s67")
        if j: a("s_add_u32 s66, s66, 7680")
        a("v_min_u32 v1, 59, v0\nv_add_u32 v1, s66, v1\nv_subrev_u32 v2, 15360, v1\nv_min_u32 v1, v1, v2\nv_lshlrev_b32 v1, 7, v1")
        self.kwait()
        self.pfl(1, SW1, 0)
    def pf_x(self):
        a = self.a
        a(f"s_lshr_b32 s66, s2, 3\ns_lshl2_add_u32 s66, s66, {WV}\ns_mul_i32 s66, s66, 2560\ns_and_b32 s67, s2, 7\ns_mul_i32 s67, s67, 327680\ns_add_u32 s66, s66, s67")
        a("v_min_u32 v1, 19, v0\nv_lshlrev_b32 v1, 7, v1")
        self.kwait()
        self.pfl(1, SQ, "s66")
    def pf_w2_addr(self):
        a = self.a
        a(f"s_and_b32 s66, {MT2}, 3\ns_mul_i32 s66, s66, 15360\nv_min_u32 v1, 59, v0\nv_lshlrev_b32 v1, 7, v1\nv_lshlrev_b32 v2, 4, v0\nv_sub_u32 v1, v1, v2")
        a(f"v_add3_u32 v{PFA}, v1, s66, v{WF}\ns_movk_i32 s75, 7680")
    def p_addr(self):
        a = self.a
        a("v_and_b32 v1, 7, v0\nv_lshrrev_b32 v2, 3, v0")
        a(f"s_lshl_b32 s67, {WV}, 5\ns_add_u32 s66, s67, {L_K}")
        a(f"v_mul_u32_u24 v3, 1056, v1\nv_lshl_add_u32 v3, v2, 2, v3\nv_add_u32 v{PA}, s66, v3")
        a(f"v_xor_b32 v1, 7, v1\nv_lshlrev_b32 v1, 4, v1\nv_lshl_add_u32 v{SA}, v2, 13, v1\nv_add_u32 v{SA2}, 4096, v{SA}")
        a(f"v_lshlrev_b32 v{B1A}, 5, v{B1A}\nv_add_u32 v{B1A}, {L_T}, v{B1A}")
        for i in range(1, 4): a(f"v_mov_b32 v{B1V+i}, 0")
        a(f"s_getreg_b32 s88, hwreg(HW_REG_XCC_ID, 0, 4)")
    def item_reads(self, rk, rv, D, tg):
        a = self.a
        for i in range(11): a.dsop(f"ds_read_b32 v{rk+i}, v{PA} offset:{D+(i>>3)*1056+(i&7)*128}", tag=tg + "k")
        for i in range(8): a.dsop(f"ds_read_b32 v{rv+i}, v{PA} offset:{D+KVD+i*128}", tag=tg + "v")
    def item_compute(self, rk, rv, sh, out, cb, tb, tg, mid=None):
        a = self.a
        for j in range(4):
            for c in range(2):
                src = sh + 2 * c + (j >> 1)
                a(f"v_and_b32 v{SP+2*j+c}, 0xffff0000, v{src}" if j & 1 else f"v_lshlrev_b32 v{SP+2*j+c}, 16, v{src}")
        a(f"s_lshl2_add_u32 s66, {cb}, {WV}\ns_lshl_b32 s66, s66, 16\ns_lshl_b32 s67, {tb}, 7\ns_sub_u32 s66, s66, s67\ns_add_u32 s66, s66, {WS_KVR+3968}")
        unp = lambda d, s: a(f"v_lshlrev_b32 v{d}, 16, v{s}\nv_and_b32 v{d+1}, 0xffff0000, v{s}")
        a.wait_lg(tg + "k")
        for i in range(11): unp(KP + 2 * i, rk + i)
        if mid: mid()
        for j in (3, 2, 1, 0):
            for i in range(8):
                kp = KP + 2 * (i + 3 - j)
                if j == 3: a(f"v_pk_mul_f32 {v(AC+2*i,2)}, {v(kp,2)}, {v(SP+2*j,2)}")
                else: a(f"v_pk_fma_f32 {v(AC+2*i,2)}, {v(kp,2)}, {v(SP+2*j,2)}, {v(AC+2*i,2)}")
        a.wait_lg(tg + "v")
        for i in range(8): unp(KP + 2 * i, rv + i)
        for i in range(8): a(f"v_pk_mul_f32 {v(AC+2*i,2)}, {v(AC+2*i,2)}, {v(KP+2*i,2)}")
        for c in range(2):
            for m in range(4): a(f"v_cvt_pk_bf16_f32 v{out+4*c+m}, v{AC+2*(7-2*m)+c}, v{AC+2*(6-2*m)+c}")
            a.vmem(f"buffer_store_dwordx4 {v(out+4*c,4)}, v{SA2 if c else SA}, {R(SWS)}, s66 offen {self.o['mp']}")
    def w2_addr(self):
        a = self.a
        a(f"v_bfe_u32 v1, v0, 2, 2\nv_mul_u32_u24 v1, 1280, v1\nv_and_b32 v2, 3, v0\nv_mul_u32_u24 v2, 40, v2\nv_lshrrev_b32 v3, 4, v0\nv_lshl_add_u32 v2, v3, 3, v2")
        a(f"s_mul_i32 s66, {WV}, 320\ns_add_u32 s66, s66, {L_K+T2D}\nv_add3_u32 v{WA0}, v1, v2, s66")
        a(f"v_min_u32 v1, 1, v3\nv_mul_u32_u24 v2, 120, v1\nv_add3_u32 v{WA1}, v{WA0}, v2, 32")
        a(f"v_and_b32 v2, 15, v0\nv_lshlrev_b32 v2, 4, v2\nv_lshl_add_u32 v{WS0}, v3, 10, v2\nv_mul_u32_u24 v1, 240640, v1\nv_add_u32 v{WS1}, v{WS0}, v1")
        a(f"s_lshr_b32 s66, s2, 2\ns_mul_i32 s66, s66, 5120\ns_and_b32 s67, s2, 3\ns_lshl_b32 s67, s67, 8\ns_add_u32 s66, s66, s67\ns_mul_i32 s67, {WV}, 491520\ns_add_u32 s66, s66, s67")
        a(f"s_add_u32 s84, s66, {WS_W2F}\ns_add_u32 s85, s84, 4096\ns_add_u32 s86, s84, {8192+240640}")
    def phase_p(self):
        a = self.a
        L2, LJ = a.label("Lp2"), a.label("Lpj")
        self.p_addr()
        a(f"s_cmp_ge_u32 s2, 192\ns_cbranch_scc1 {L2}")
        s0 = a.snap(); lg0 = dict(a.lg)
        self.w2_addr()
        a.wait_vm("pld"); a("s_barrier"); self.stamp("Pbar")
        for i, (ad, off) in enumerate(((WA0, 0), (WA1, 0), (WA0, 184))):
            a.dsop(f"ds_read_b64_tr_b16 {v(WD+4*i,2)}, v{ad} offset:{off}")
            a.dsop(f"ds_read_b64_tr_b16 {v(WD+4*i+2,2)}, v{ad} offset:{off+5120}", tag=f"wf{i}")
        self.item_reads(RK, RV, 0, "pa")
        a.dsop(f"ds_write_b128 v{B1A}, {v(B1V,4)} offset:16")
        def w2st():
            a.vmem(f"buffer_store_dwordx4 {v(WD,4)}, v{WS0}, {R(SWS)}, s84 offen {self.o['mp']}")
            a.vmem(f"buffer_store_dwordx4 {v(WD+4,4)}, v{WS1}, {R(SWS)}, s85 offen {self.o['mp']}")
            a("s_mov_b64 exec, 0xffffffff")
            a.vmem(f"buffer_store_dwordx4 {v(WD+8,4)}, v{WS0}, {R(SWS)}, s86 offen {self.o['mp']}")
            a("s_mov_b64 exec, -1")
        self.item_compute(RK, RV, SHR, OUT, "s70", "s71", "pa", w2st)
        a.mark("pst")
        a(f"s_nop 1\ns_branch {LJ}\n{L2}:")
        s1 = a.snap(); a.restore(s0); a.lg = dict(lg0)
        a.wait_vm("pld"); a("s_barrier"); self.stamp("Pbar")
        self.item_reads(RK, RV, 0, "pa")
        a.dsop(f"ds_write_b128 v{B1A}, {v(B1V,4)} offset:16")
        self.item_compute(RK, RV, SHR, OUT, "s70", "s71", "pa", lambda: self.item_reads(RK2, RV2, T2D, "pb"))
        self.item_compute(RK2, RV2, SH2, OUT2, "s84", "s85", "pb")
        a.mark("pst")
        a(f"s_nop 1\n{LJ}:")
        a.merge([s1, a.snap()]); a.lg = {}

    def g1_addr(self):
        super().g1_addr()
        self.a(f"s_lshl_b32 s77, {WV}, 12")
    def g1_dma_list(self, n):
        L = G.g1_dma_list(self, n)
        return [(e[0].replace(f"s77, {(n%4)*4096}", f"s77, {(n%4)*16384}"),) + e[1:] for e in L]
    def g1_reads(self, q):
        L = G.g1_reads(self, q)
        slot = (q >> 2) % 4
        L[0] = L[0].replace(f"offset:{slot*4096}", f"offset:{slot*16384}")
        return L
    def g1_loop(self, hook, dq, side):
        a = self.a; o = self.o; PD = o["PD"]
        a.wait_vm("st0", lg=0); a("s_barrier")
        self.stamp("bar0")
        for q in (0, 1):
            L = self.g1_reads(q)
            for i, t in enumerate(L): a.dsop(t, tag=f"rd{q}" if i == len(L) - 1 else None)
        self.dq = dq
        for q in range(40):
            n, s = q >> 2, q & 3
            fb = 96 + 16 * (q % 3)
            rd = self.g1_reads(q + 2) if q + 2 < 40 else []
            bar = (s == 2 and n + 1 < 10)
            self.q = q; self.pb = not bar
            def mf(t):
                c = v(48 + 16 * t, 16) if q else "0"
                a(f"v_mfma_f32_32x32x16_bf16 {v(48+16*t,16)}, {v(fb+4*t,4)}, {v(fb+12,4)}, {c}")
            def cs(t):
                if s: return
                c = "v[32:35]" if (q or t) else "0"
                a(f"v_mfma_f32_16x16x32_bf16 v[32:35], {v(20+4*t,4)}, {v(fb+4*t,4)}, {c}")
            def sq(h):
                c = v(SQA + 4 * h, 4) if q else "0"
                a(f"v_mfma_f32_4x4x4_16b_bf16 {v(SQA+4*h,4)}, {v(fb+12+2*h,2)}, {v(fb+12+2*h,2)}, {c}")
            def st():
                c = "v[44:47]" if q else "0"
                a(f"v_mfma_f32_16x16x32_bf16 v[44:47], {v(144+4*(q%3),4)}, {v(fb+12,4)}, {c}")
            def rds(k):
                for _ in range(k):
                    if rd:
                        t = rd.pop(0); a.dsop(t, tag=f"rd{q+2}" if not rd else None)
            def gate():
                while side and isinstance(side[0], int):
                    t = side[0]
                    if q < t or (q == t and not self.pb): return False
                    side.pop(0)
                return bool(side)
            def used(n0):
                L = [l for l in a.lines[n0:] if not l.strip().endswith(":")]
                return len(L) - (1 if L and L[0].strip().startswith("s_") else 0)
            def fill(ns, nd=0, nm=0, hk=None):
                n0 = len(a.lines)
                if nm and dq and not dq[0][1]: self.emit([dq.pop(0)])
                elif gate() and (callable(side[0]) or isinstance(side[0], str) and side[0].startswith("s_") and "\n" not in side[0]): self.e1(side.pop(0))
                rds(nd); self.pop(dq, nm)
                if hk: hook(q, hk)
                while gate():
                    t = side[0]
                    c = t.count("\n") + 1 if isinstance(t, str) else 1
                    if isinstance(t, str) and t.startswith("ds_write"): c = o["wc1"]
                    if used(n0) + min(c, 3) > ns: break
                    side.pop(0); self.e1(t)
                    if c > 1 and isinstance(t, str) and t.startswith("ds_write"): n0 += 0; ns -= c - 1
            dr = (o["dr0"] if q < o["dq0"] else 2) // 2
            S = o["sl"]
            a.wait_lg(f"rd{q}")
            mf(0)
            if bar:
                fill(S, 0, dr - 1)
                mf(1)
                while f"st{n+1}" not in a.vm: self.pop(dq, 1)
                a.wait_vm(f"st{n+1}", lg=0); a("s_barrier")
                self.pb = True
                if n + PD <= 9: dq += self.g1_dma_list(n + PD)
                rds(3); mf(2); fill(S, 5, dr, "bar")
                st(); fill(2); sq(0); fill(0); sq(1)
            else:
                fill(S, 3, dr)
                if s == 0: cs(0); fill(2)
                mf(1); fill(S, 3, dr)
                if s == 0: cs(1); fill(2)
                mf(2); fill(S, 2, 0, "mid")
                if s == 0: cs(2); fill(2)
                st(); fill(2); sq(0); fill(0); sq(1)
            if q == 37:
                assert not side
                self.g1_cs_write()
            if q in (1, 3, 7, 11, 15, 23): self.stamp(f"q{q}")
        assert not dq and not side, (len(dq), len(side))

    def cv_addr(self):
        a = self.a
        a("s_lshr_b32 s66, s2, 1\ns_mul_i32 s66, s66, 5\ns_and_b32 s67, s2, 1\ns_mul_i32 s67, s67, 3")
        a("s_add_u32 s81, s66, s67\ns_lshl_b32 s81, s81, 12\ns_add_u32 s82, s81, 4096\ns_add_u32 s83, s66, 2\ns_lshl_b32 s83, s83, 12")
        a(f"s_lshl_b32 s67, {WV}, 10\nv_lshlrev_b32 v{TID}, 4, v0\nv_add_u32 v{TID}, s67, v{TID}\nv_add_u32 v{HW}, {L_HS+32}, v{TID}")
        a(f"v_bfe_u32 v1, v0, 3, 2\nv_mov_b32 v{SPA}, s81\nv_mov_b32 v3, s82")
        a(f"v_cmp_eq_u32 vcc, 1, v1\nv_cndmask_b32 v{SPA}, v{SPA}, v3, vcc\nv_mov_b32 v3, s83\nv_cmp_le_u32 vcc, 2, v1\nv_cndmask_b32 v{SPA}, v{SPA}, v3, vcc")
        a(f"v_lshrrev_b32 v{FXA}, 11, v{SPA}")
        a(f"v_lshrrev_b32 v1, 5, v0\nv_lshl_add_u32 v1, v1, 2, s66\nv_lshrrev_b32 v1, 6, v1\nv_and_b32 v2, 31, v0\nv_mad_u32_u24 v1, v2, 10, v1")
        a(f"v_lshrrev_b32 v2, 8, v1\nv_lshlrev_b32 v2, 6, v2\nv_sub_u32 v1, v1, v2\nv_lshlrev_b32 v{PLA}, {FS}, v1")
        a(f"s_mul_i32 s66, {WV}, 48\ns_and_b32 s67, s2, 0x87\nv_add_u32 v1, s66, v0\nv_and_b32 v2, 15, v0\nv_lshl_add_u32 v2, v2, 3, s67")
        a(f"v_cmp_gt_u32 vcc, 48, v0\nv_cndmask_b32 v1, v2, v1, vcc\nv_lshlrev_b32 v{PLA+1}, {FS}, v1")
        a(f"s_mov_b32 s72, {FP}")
    def cv_h_loads(self):
        a = self.a; m = self.o["mssm"]
        L = []
        for z in (1, 2, 0):
            L.append((f"buffer_load_dwordx4 {v(CH_+8*z,4)}, v{TID}, {R(SH)}, s{81+z} offen {m}", 1))
            L.append((f"buffer_load_dwordx2 {v(CH_+8*z+4,2)}, v{TID}, {R(SH)}, s{81+z} offen offset:16 {m}", 1, f"cvh{z}"))
        L.append((f"buffer_load_dwordx2 {v(SPV+2,2)}, v{SPA}, {R(SH)}, 0 offen {m}", 1))
        L.append((f"buffer_load_ushort v{SPV}, v{FXA}, {R(SD)}, 0 offen", 1, "cvh"))
        return L
    def hs_write(self, z):
        a = self.a; L = [lambda: a.wait_vm(f"cvh{z}")]
        d = CH_ + 8 * z; t = CT_
        L.append(f"ds_write_b128 v{HW}, {v(d,4)} offset:{(4*z)*4160}")
        L += [f"v_alignbit_b32 v{t+i}, v{d+i+1}, v{d+i}, 16" for i in range(4)]
        L.append(f"ds_write_b128 v{HW}, {v(t,4)} offset:{(4*z+1)*4160}")
        L += [f"v_mov_b32 v{t+4+i}, v{d+i+1}" for i in range(4)]
        L.append(f"ds_write_b128 v{HW}, {v(t+4,4)} offset:{(4*z+2)*4160}")
        L += [f"v_alignbit_b32 v{t+8+i}, v{d+i+2}, v{d+i+1}, 16" for i in range(4)]
        L.append(f"ds_write_b128 v{HW}, {v(t+8,4)} offset:{(4*z+3)*4160}")
        return L
    def cv_special(self):
        a = self.a; S = SPV
        a(f"v_lshlrev_b32 v{S}, 16, v{S}\nv_lshlrev_b32 v1, 16, v{S+2}\nv_add_f32 v1, v1, v{S}\nv_cvt_pk_bf16_f32 v{FXV}, v1, v1")
        a(f"v_mov_b32 v1, 0xffff\nv_bfi_b32 v{S+2}, v1, v{FXV}, v{S+2}")
        a(f"v_lshlrev_b64 {v(S+2,2)}, 16, {v(S+2,2)}")
        a(f"v_bfe_u32 v1, v0, 1, 2\nv_lshlrev_b32 v2, 4, v1\nv_sub_u32 v2, 48, v2\nv_lshlrev_b64 {v(S+2,2)}, v2, {v(S+2,2)}")
        a(f"s_cmp_eq_u32 {WV}, 0\ns_cselect_b64 s[66:67], -1, 0\ns_and_b32 s68, s66, 0xaaaaaaaa\ns_mov_b32 s69, s68")
        a(f"v_cndmask_b32 v{S+2}, 0, v{S+2}, s[68:69]\nv_cndmask_b32 v{S+3}, 0, v{S+3}, s[68:69]\nv_cndmask_b32 v{FXV}, 0, v{FXV}, s[66:67]")
        a(f"v_bfe_u32 v3, v0, 3, 2\nv_min_u32 v3, 2, v3\nv_mul_u32_u24 v3, {4*4160}, v3\nv_add_u32 v{FXA}, {L_HS+32}, v3")
        a(f"v_and_b32 v2, 1, v0\nv_mul_u32_u24 v1, 4160, v1\nv_lshl_add_u32 v1, v2, 4, v1\nv_add_u32 v1, v1, v3\nv_add_u32 v{SPA}, {L_HS}, v1")
        a(f"s_mul_i32 s68, {WV}, {KVP}\ns_add_u32 s68, s68, {L_KV-KVP+4096}\nv_lshl_add_u32 v1, v0, 4, s68")
        a(f"v_cndmask_b32 v{SPA}, v1, v{SPA}, s[66:67]\nv_cndmask_b32 v{FXA}, v1, v{FXA}, s[66:67]")
        a(f"v_mov_b32 v{S}, 0\nv_mov_b32 v{S+1}, 0")
    def cv_addr2(self):
        a = self.a
        a(f"v_and_b32 v1, 15, v0\nv_lshrrev_b32 v2, 4, v0\nv_add_u32 v3, 1, v1\nv_and_b32 v{AM}, 3, v3\nv_sub_u32 v3, v3, v{AM}")
        a(f"v_mul_u32_u24 v{AM}, 4160, v{AM}\nv_lshl_add_u32 v{AM}, v3, 1, v{AM}\nv_lshl_add_u32 v{AM}, v2, 4, v{AM}")
        a(f"v_lshlrev_b32 v{BM}, 4, v2\nv_lshlrev_b32 v3, 5, v1\nv_sub_u32 v{BM}, v{BM}, v3")
        a(f"s_lshl_b32 s67, {WV}, 7\ns_add_u32 s68, s67, {L_HS + 8*4160}\nv_add_u32 v{ACC}, s68, v{AM}\nv_add_u32 v{AC2}, 2048, v{ACC}")
        a(f"s_and_b32 s69, s2, 1\ns_lshl_b32 s68, s69, 9\ns_sub_u32 s68, s67, s68\ns_add_u32 s68, s68, {L_KV + 2*KVP + 480 + 512}\nv_add_u32 v{BC}, s68, v{BM}")
        a(f"s_lshr_b32 s66, {WV}, 1\ns_and_b32 s67, {WV}, 1\ns_lshl_b32 s67, s67, 8")
        a(f"s_mul_i32 s68, s66, {4*4160}\ns_add_u32 s68, s68, s67\ns_add_u32 s68, s68, {L_HS}\nv_add_u32 v{AM}, s68, v{AM}\nv_add_u32 v{AM2}, 2048, v{AM}")
        a(f"s_mul_i32 s68, s66, {KVP}\ns_add_u32 s68, s68, s67\ns_add_u32 s68, s68, {L_KV + 480}\nv_add_u32 v{BM}, s68, v{BM}")
        a(f"s_lshl_b32 s68, {WV}, 13\nv_lshl_add_u32 v{PXW}, v0, 4, s68")
        a(f"s_lshl_b32 s68, s66, 14\ns_lshl4_add_u32 s68, s67, s68\nv_lshl_add_u32 v{PXR}, v0, 4, s68")
        a(f"s_lshl_b32 s68, {WV}, 10\ns_add_u32 s68, s68, {L_PXC}\nv_lshl_add_u32 v{PCR}, v0, 4, s68")
        a(f"v_lshl_add_u32 v{YC}, v2, 3, v3\ns_lshl1_add_u32 s68, {WV}, s69\ns_lshl_b32 s68, s68, 9\ns_add_u32 s68, s68, s83\ns_add_u32 s68, s68, {WS_YT}\nv_add_u32 v{YC}, s68, v{YC}")
        a(f"v_lshrrev_b32 v1, 5, v0\nv_lshl_add_u32 v1, v1, 4, v3\nv_and_b32 v2, 1, v2\nv_lshl_add_u32 v1, v2, 9, v1")
        a(f"s_lshl_b32 s68, {WV}, 11\ns_add_u32 s68, s68, s81\ns_add_u32 s68, s68, {WS_YT}\nv_add_u32 v{YM}, s68, v1")
    def h_addr(self):
        a = self.a
        a(f"s_lshl2_add_u32 s66, {MT}, {WV}\ns_lshl_b32 s89, s66, 7\ns_mul_i32 s66, s66, {2*48*1024}\ns_mul_i32 s67, {NT}, 3072\ns_add_u32 s66, s66, s67\ns_add_u32 s66, s66, {WS_H}")
        a(f"v_bfe_u32 v1, v0, 4, 1\nv_mul_u32_u24 v1, {48*1024}, v1\nv_and_b32 v2, 15, v0\nv_lshl_add_u32 v1, v2, 4, v1")
        a(f"v_lshrrev_b32 v2, 5, v0\nv_lshl_add_u32 v1, v2, 8, v1\nv_add_u32 v{HST}, s66, v1")
        a(f"s_add_u32 s89, s89, {WS_ST}\ns_cmp_lg_u32 {NT}, 0\ns_cselect_b32 s89, 0x80000000, s89\nv_lshl_add_u32 v1, v0, 2, s89\nv_lshl_or_b32 v{GSA}, v2, 31, v1")
        a(f"v_and_b32 v1, 31, v0\nv_lshlrev_b32 v1, 5, v1\nv_lshl_add_u32 v1, v2, 4, v1\nv_add_u32 v38, {L_T}, v1")
        a("v_mul_u32_u24 v39, 0x202, v2\nv_lshl_or_b32 v39, v39, 16, v39\nv_add_u32 v39, 0x01000100, v39")
        a(f"s_mul_i32 s66, {MT2}, {4*49152}\ns_mul_i32 s67, {WV}, 12288\ns_add_u32 s66, s66, s67\ns_add_u32 s66, s66, {WS_H}\nv_lshl_add_u32 v{HLD}, v0, 4, s66")
        for i in range(4):
            a(f"s_add_u32 s66, s14, {i+1}\ns_and_b32 s66, s66, 3\ns_mul_i32 s{40+i}, s66, 49152")
        a(f"s_lshl_b32 s44, {MT}, 8\ns_lshl3_add_u32 s44, {NT}, s44\ns_lshr_b32 s66, {WV}, 1\ns_lshl_b32 s66, s66, 7\ns_add_u32 s44, s44, s66")
        a(f"s_and_b32 s66, {WV}, 1\ns_lshl2_add_u32 s44, s66, s44\ns_add_u32 s44, s44, {F2}")
        a(f"s_lshl_b32 s45, {MT2}, 7\ns_add_u32 s45, s45, {F2}\ns_lshl_b32 s66, {WV}, 3\nv_add_u32 v1, s66, v0\nv_and_b32 v2, 1, v0\nv_cmp_gt_u32 vcc, 8, v0\nv_cndmask_b32 v1, v2, v1, vcc\nv_lshlrev_b32 v{P2A}, 2, v1")
        a(f"s_mul_i32 s67, {NT2}, 160\nv_lshrrev_b32 v1, 4, v0\nv_mul_u32_u24 v1, 40, v1\nv_add_u32 v{B2A}, s67, v1")
        a(f"s_lshl2_add_u32 s66, {MT2}, s14\ns_lshl_b32 s66, s66, 4\nv_and_b32 v1, 15, v0\nv_add_u32 v1, s66, v1\nv_mul_u32_u24 v{QO}, 1280, v1\nv_add_u32 v{QO}, v{QO}, v{B2A}")
        a(f"s_lshl_b32 s46, s2, {FS}\ns_lshl2_add_u32 s46, {WV}, s46\ns_add_u32 s46, s46, {F3}\ns_lshl_b32 s47, {NT2}, {FS+5}\ns_add_u32 s47, s47, {F3}")

    def gelu_list(self):
        a = self.a; L = []
        def e(s, c=4):
            for l in s.split("\n"): L.append((l, 16 if l.startswith(("v_exp", "v_rcp", "v_sqrt")) else c))
        e("s_mov_b32 s66, 0xaaaaaaaa\ns_mov_b32 s67, s66\ns_mov_b32 s68, 0xcccccccc\ns_mov_b32 s69, s68")
        for h in range(2):
            S = SQA + 4 * h
            e(f"v_cndmask_b32 v{S}, v{S}, v{S+1}, s[66:67]\nv_cndmask_b32 v{S+2}, v{S+2}, v{S+3}, s[66:67]\nv_cndmask_b32 v{36+h}, v{S}, v{S+2}, s[68:69]")
        e("v_add_f32 v36, v36, v37\nv_mov_b32 v46, v45\nv_mov_b32 v37, v36\nv_mul_f32 v44, 0x3acccccd, v44\nv_permlane32_swap_b32 v36, v37\nv_add_f32 v45, v36, v37")
        e("v_mul_f32 v45, 0x3acccccd, v45\nv_fma_f32 v45, -v44, v44, v45\nv_max_f32 v45, 0, v45\nv_cvt_pk_bf16_f32 v45, v45, v46")
        e("v_and_b32 v46, 0xffff0000, v45\nv_lshlrev_b32 v45, 16, v45\nv_add_f32 v45, 0x3727c5ac, v45\nv_mul_f32 v46, 0xbfb8aa3b, v46")
        e("v_cvt_pk_bf16_f32 v45, v45, v45\nv_lshlrev_b32 v45, 16, v45\nv_sqrt_f32 v45, v45\nv_exp_f32 v46, v46")
        e("v_cvt_pk_bf16_f32 v36, -v44, v45\nv_perm_b32 v40, v36, v36, v39\nv_and_b32 v38, 0xffff0000, v36")
        e("v_mov_b32 v41, v40\nv_mov_b32 v42, v40\nv_mov_b32 v43, v40\nv_rcp_f32 v36, v38")
        for t in range(3):
            L.append((lambda t=t: (self.lgw(f"T{t}"), a(f"v_mfma_f32_32x32x16_bf16 {v(48+16*t,16)}, {v(4+4*t,4)}, v[40:43], {v(48+16*t,16)}")), -1))
        A = -2 * math.sqrt(2 / math.pi) * math.log2(math.e); B = A * 0.044715
        fh = lambda x: "0x%08x" % struct.unpack("<I", struct.pack("<f", x))[0]
        e(f"v_add_f32 v46, 1.0, v46\nv_mov_b32 v39, v38\nv_mul_f32 v37, v36, v36\nv_rcp_f32 v46, v46\nv_mul_f32 v37, v37, v36\nv_mul_f32 v36, {fh(A)}, v36\nv_mul_f32 v37, {fh(B)}, v37")
        e("v_cvt_pk_bf16_f32 v46, v46, v46\nv_lshlrev_b32 v46, 16, v46\nv_sub_f32 v45, 1.0, v46\nv_cvt_pk_bf16_f32 v45, v46, v45")
        L.append((f"buffer_store_dword v45, v{GSA}, {R(SWS)}, 0 offen {self.o['mhs']}", 0))
        def stA(g):
            P = 48 + 8 * g; T = 16 - 12 * (g & 1)
            return ([f"v_pk_mul_f32 {v(T+2*i,2)}, {v(P+2*i,2)}, {v(P+2*i,2)}" for i in range(4)] +
                    [f"v_pk_fma_f32 {v(T+2*i,2)}, {v(T+2*i,2)}, v[36:37], v[36:37] op_sel:[0,1,0] op_sel_hi:[1,1,0]" for i in range(4)] +
                    [f"v_pk_mul_f32 {v(T+2*i,2)}, {v(T+2*i,2)}, {v(P+2*i,2)}" for i in range(4)]) if g < 6 else []
        def stE(g):
            P = 48 + 8 * g; T = 16 - 12 * (g & 1); O = T + 8
            return ([f"v_pk_mul_f32 {v(T+2*i,2)}, {v(T+2*i,2)}, {v(P+2*i,2)}" for i in range(4)] +
                    [f"v_cvt_pk_bf16_f32 v{O+i}, v{T+2*i}, v{T+2*i+1}" for i in range(4)] +
                    [(f"buffer_store_dwordx4 {v(O,4)}, v{HST}, {R(SWS)}, 0 offen offset:{512*g} {self.o['mhs']}", "hst")]) if g >= 0 else []
        def put(N, k):
            while k > 0 and N:
                t = N.pop(0)
                if isinstance(t, tuple): L.append((t, 0))
                else: e(t); k -= 1
            if N and isinstance(N[0], tuple): L.append((N.pop(0), 0))
        put(stA(0), 99)
        for g in range(6):
            T = 16 - 12 * (g & 1)
            N = stE(g - 1)
            C = [f"v_pk_fma_f32 {v(T+2*i,2)}, {v(T+2*i,2)}, v[38:39], v[38:39]" for i in range(4)]
            for i in range(8):
                e(f"v_exp_f32 v{T+i}, v{T+i}")
                put(N, (2, 2, 1, 1, 1, 1, 0, 0)[i])
                if i in (3, 5, 6): e(C.pop(0))
            N = C + stA(g + 1)
            if g == 5: N = C + stE(5)
            for i in range(8):
                e(f"v_rcp_f32 v{T+i}, v{T+i}")
                if g < 5: put(N, (2, 2, 1, 2, 1, 2, 1, 2)[i])
                else: put(N, (1, 0, 1, 0, 1, 0, 1, 99)[i])
            assert not N
        return L
    def lgw(self, tag):
        a = self.a
        if tag not in a.lg: return
        n = a.lg[tag]
        a.wait_lg(tag)
        for t in list(a.lg):
            if a.lg[t] >= n: del a.lg[t]
    def cv_rd(self, si, kind, i):
        a = self.a
        C = si < 2; b = si if C else si - 2
        if kind == "A":
            base = ((ACC, AC2) if C else (AM, AM2))[i >> 2]; o = (512 * (i & 3) + 64 * b) // 8
            a.dsop(f"ds_read2_b64 {v(96+4*i,4)}, v{base} offset0:{o} offset1:{o+1}", tag=f"A{i}")
        else:
            a.dsop(f"ds_read_b128 {v(128+4*i,4)}, v{BC if C else BM} offset:{512*(7-i)+64*b}", tag=f"B{i}")
    def gelu_conv(self, hook):
        a = self.a; o = self.o
        a.wait_vm("cvkv", lg=0); a("s_barrier"); a.lg = {}
        self.stamp("fbar")
        for k_, i in (("A", 0), ("B", 7), ("B", 5), ("B", 3), ("B", 1)): self.cv_rd(0, k_, i)
        for t in range(3): a.dsop(f"ds_read_b128 {v(4+4*t,4)}, v38 offset:{1024*t}", tag=f"T{t}")
        pre = [("A", 1), ("B", 6), ("B", 4), ("B", 2), ("B", 0)] + [("A", i) for i in range(2, 8)]
        Gl = self.gelu_list()
        for _ in range(o["g0"]):
            t, c = Gl.pop(0); self.e1(t)
            if pre and _ % 2 == 0: self.cv_rd(0, *pre.pop(0))
        while pre: self.cv_rd(0, *pre.pop(0))
        started = set(); c = 0; wq = []; T_ = [0, 0, 0]
        for si in range(6):
            C = si < 2
            for aa in range(8):
                js = [m for m in (3, 2, 1, 0) if 2 * m + 1 >= aa] if C else list(range(7, aa - 1, -1))
                for ji, j in enumerate(js):
                    bb = (2 * j + 1 - aa) if C else j - aa
                    d = (DC if C else DM) + 4 * j
                    n0 = len(a.lines)
                    self.lgw(f"A{aa}"); self.lgw(f"B{bb}")
                    nm = len(a.lines)
                    a(f"v_mfma_f32_16x16x32_bf16 {v(d,4)}, {v(96+4*aa,4)}, {v(128+4*bb,4)}, {v(d,4) if d in started else '0'}")
                    started.add(d)
                    if si < 5:
                        if ji == 0: self.cv_rd(si + 1, "B", bb)
                        if ji == len(js) - 1: self.cv_rd(si + 1, "A", aa)
                    if wq and wq[0][0] <= c: a.dsop(wq.pop(0)[1])
                    if si == 1 and bb == 0: wq.append((c + 3, f"ds_write_b128 v{PCR}, {v(d,4)} offset:{4096*j}"))
                    if si == 5 and bb == 0: wq.append((c + 2, f"ds_write_b128 v{PXW}, {v(d,4)} offset:{1024*j}"))
                    hook(c)
                    tm = max(T_[0] + 4 * (nm - n0), T_[2]); T_[2] = tm + 16
                    T_[0] = tm + 4 * (len(a.lines) - nm)
                    while Gl:
                        t, cc = Gl[0]
                        if cc < 0:
                            T_[0] = max(T_[0], T_[2]) + 4; T_[2] = T_[0] + 28
                        else:
                            s_ = max(T_[0], T_[1]) if cc else T_[0]
                            if s_ + 4 > T_[2] + o["tol"]: break
                            T_[0] = s_ + 4
                            if cc: T_[1] = s_ + cc
                        Gl.pop(0); self.e1(t)
                    if not Gl and "gend" not in started:
                        started.add("gend"); self.gend = c; print("gelu ends at slot", c, "t", T_, file=sys.stderr); self.stamp("gelu")
                    c += 1
        assert not Gl; print("conv end t", T_, file=sys.stderr)
        for w_ in wq: a.dsop(w_[1])
        self.stamp("conv")
        a("s_waitcnt lgkmcnt(0)\ns_barrier"); a.lg = {}
        a(f"s_mul_i32 s66, {WV}, 3072\nv_add_u32 v{PCR}, s66, v{PCR}")
        for i in range(4):
            a.dsop(f"ds_read_b128 {v(96+8*i,4)}, v{PXR} offset:{1024*i}")
            a.dsop(f"ds_read_b128 {v(100+8*i,4)}, v{PXR} offset:{1024*i+8192}", tag=f"px{i}")
        for i in range(4): a.dsop(f"ds_read_b128 {v(128+4*i,4)}, v{PCR} offset:{1024*i}", tag=f"pc{i}")
        hook(c)
        add = lambda D, P: a(f"v_pk_add_f32 {v(D,2)}, {v(D,2)}, {v(P,2)}\nv_pk_add_f32 {v(D+2,2)}, {v(D+2,2)}, {v(P+2,2)}")
        for p in range(2):
            X = 96 + 16 * p; Y = X + 8; O = X + 4
            self.lgw(f"px{2*p}"); add(X, X + 4)
            self.lgw(f"px{2*p+1}"); add(Y, Y + 4)
            a(f"v_cvt_pk_bf16_f32 v{O}, v{X}, v{X+1}\nv_cvt_pk_bf16_f32 v{O+2}, v{Y}, v{Y+1}")
            a(f"v_cvt_pk_bf16_f32 v{O+1}, v{X+2}, v{X+3}\nv_cvt_pk_bf16_f32 v{O+3}, v{Y+2}, v{Y+3}")
            a(f"v_permlane16_swap_b32 v{O}, v{O+2}\nv_permlane16_swap_b32 v{O+1}, v{O+3}")
        self.lgw("pc1"); add(128, 132); self.lgw("pc3"); add(136, 140); add(128, 136)
        a("v_cvt_pk_bf16_f32 v132, v128, v129\nv_cvt_pk_bf16_f32 v133, v130, v131")
    def y_stores(self):
        a = self.a
        for p in range(2): a.vmem(f"buffer_store_dwordx4 {v(100+16*p,4)}, v{YM}, {R(SWS)}, 0 offen offset:{1024*p} {self.o['my']}")
        a.vmem(f"buffer_store_dwordx2 v[132:133], v{YC}, {R(SWS)}, 0 offen {self.o['my']}", tag="yst")

    def g2_addr(self):
        a = self.a; OW = "s14"
        a("v_lshlrev_b32 v1, 4, v0")
        for i in range(4):
            a(f"s_add_u32 s66, {OW}, {i+1}\ns_and_b32 s66, s66, 3\ns_mul_i32 s66, s66, 15360")
            a(f"s_add_u32 s66, s66, {L_PT}\nv_add_u32 v{PW0+i}, s66, v1")
        a(f"v_lshrrev_b32 v1, 4, v0\nv_mul_u32_u24 v1, 20, v1\nv_bfe_u32 v2, v0, 2, 2\nv_add_u32 v1, v1, v2")
        a(f"v_and_b32 v2, 6, v1\nv_bfe_u32 v3, v0, 1, 1\ns_lshl_b32 s66, {OW}, 1\nv_or_b32 v3, s66, v3\nv_xor_b32 v2, v2, v3")
        a(f"v_lshlrev_b32 v1, 7, v1\nv_lshl_add_u32 v1, v2, 4, v1\nv_and_b32 v2, 1, v0\nv_lshl_add_u32 v1, v2, 3, v1\nv_add_u32 v{YT0}, {L_Y}, v1\nv_xor_b32 v{YT1}, 64, v{YT0}")
        a(f"s_mul_i32 s66, {NT2}, 80\ns_mul_i32 s67, {WV}, 24\ns_add_u32 s66, s66, s67\ns_lshl_b32 s66, s66, 12\ns_lshl_b32 s67, {MT2}, 7\ns_add_u32 s66, s66, s67\ns_add_u32 s66, s66, {WS_YT}")
        a(f"v_lshrrev_b32 v1, 3, v0\nv_and_b32 v2, 6, v1\nv_and_b32 v3, 7, v0\nv_xor_b32 v2, v2, v3\nv_lshlrev_b32 v1, 12, v1\nv_lshl_add_u32 v1, v2, 4, v1\nv_add_u32 v{YD}, s66, v1")
        a(f"s_lshl2_add_u32 s66, {MT2}, {OW}\ns_lshl_b32 s66, s66, 4\nv_and_b32 v1, 15, v0\nv_add_u32 v1, s66, v1")
        a(f"v_lshlrev_b32 v{GA}, 2, v1\nv_add_u32 v{GA}, {WS_ST}, v{GA}\nv_lshrrev_b32 v1, 1, v0\nv_and_b32 v2, 1, v0\nv_lshlrev_b32 v1, {FS}, v1\nv_lshl_add_u32 v{P3A}, v2, 3, v1")
        a(f"s_cmp_eq_u32 {WV}, 3\ns_cselect_b64 s[70:71], 0, -1\ns_mul_i32 s72, {WV}, 3072\ns_mov_b32 s73, 32768\ns_mov_b32 s74, 65536")
    def g2_h_list(self, i):
        L = []
        for k in range(12):
            if k % 2 == 0: L.append((f"s_add_u32 s89, s{40+i}, s{PO+k//2}", 0))
            L.append((f"buffer_load_dwordx4 {v(HR(i,k),4)}, v{HLD}, {R(SWS)}, s89 offen offset:{(k%2)*1024} {self.o['mh']}", 1, f"h{i}_{k}"))
        return L
    def g2_main(self, Hrest):
        a = self.a; o = self.o
        Q, XR, GR, GC, U, YR = 48, 68, 58, 60, 96, 116
        side = {}
        def at(st, mi, f): side.setdefault((st, mi), []).append(f)
        def seq(c, L, per=2):
            for i in range(0, len(L), per):
                for t in L[i:i + per]: at(c // 60, c % 60, (lambda t=t: self.e1(t)))
                c += 1
            return c
        P = lambda k: o[k][0] * 60 + o[k][1]
        AD = self.cap(self.g2_addr)
        n = sum(e[1] for e in Hrest)
        for i in range(n):
            c = 1 + i * o["hg"]; at(c // 60, c % 60, lambda: self.pop(Hrest, 1))
        BL = [lambda: a.wait_vm("b2")]
        for i in range(10):
            d = DR(1, i >> 1) + 2 * (i & 1)
            BL += [f"v_lshlrev_b32 v{d}, 16, v{B2+i}", f"v_and_b32 v{d+1}, 0xffff0000, v{B2+i}"]
        c = seq(0, BL, 1)
        assert c <= 1 + 12 * o["hg"]
        L = []
        while AD:
            L.append(AD.pop(0))
            if L[-1].startswith("s_") and AD and "\n" not in L[-1]: L[-1] += "\n" + AD.pop(0)
        c = seq(c, L[:24], 1); c = seq(c, L[24:], 2); print("g2 addr done", c, file=sys.stderr)
        ml = [f"buffer_load_dwordx4 {v(Q,4)}, v{QO}, {R(SQ)}, 0 offen", f"buffer_load_dwordx4 {v(Q+4,4)}, v{QO}, {R(SQ)}, 0 offen offset:16",
              f"buffer_load_dwordx2 {v(Q+8,2)}, v{QO}, {R(SQ)}, 0 offen offset:32", (f"buffer_load_dword v{GR}, v{GA}, {R(SWS)}, 0 offen sc1", "misc")]
        c = seq(c, ml, 1); assert c <= 63 and c < P("pub3")
        for i in range(3):
            for j in range(5):
                at(i + 1, 3 + 2 * j, lambda i=i, j=j: a.dsop(f"ds_write_b128 v{PW0+i}, {v(DR(i,j),4)} offset:{5120*i+1024*j}"))
            b = o["pb"] if i < 2 else o["pb3"]
            at(i + 1, b, lambda: a("s_waitcnt lgkmcnt(0)\ns_barrier"))
            for j in range(5):
                d = DR(i, j) if i < 2 else U + 4 * j
                at(i + 1, b + 1 + j, lambda i=i, j=j, d=d: a.dsop(f"ds_read_b128 {v(d,4)}, v{PRD if i else PW2} offset:{5120*i+1024*j}", tag=f"pr{i}"))
            if i < 2: at(i + 1, 59, lambda i=i: self.lgw(f"pr{i}"))
        def pub():
            a.wait_vm("yst"); self.one_lane_store(NV, "s46"); self.stamp("pub3")
        at(*o["pub3"], pub)
        p3load = f"buffer_load_dwordx2 {v(P3V,2)}, v{P3A}, {R(SWS)}, s47 offen sc1"
        at(*o["poll3"], lambda: a.vmem(p3load, tag="poll3"))
        def ychk():
            self.stamp("c3a"); self.check("poll3", p3load, [P3V, P3V + 1]); self.stamp("chk3")
            a(f"s_add_u32 m0, s72, {L_Y}")
            a.vmem(f"buffer_load_dwordx4 v{YD}, {R(SWS)}, 0 offen sc1 lds")
            a("s_add_u32 m0, m0, 1024\ns_mov_b64 exec, s[70:71]")
            a.vmem(f"buffer_load_dwordx4 v{YD}, {R(SWS)}, s73 offen sc1 lds")
            a("s_add_u32 m0, m0, 1024")
            a.vmem(f"buffer_load_dwordx4 v{YD}, {R(SWS)}, s74 offen sc1 lds", tag="y")
            a("s_mov_b64 exec, -1")
        at(*o["chk3"], ychk)
        L = [lambda: a.wait_vm("misc"), f"v_lshlrev_b32 v{GC}, 16, v{GR}", f"v_and_b32 v{GC+2}, 0xffff0000, v{GR}", f"v_mov_b32 v{GC+3}, v{GC+2}"]
        for i in range(10):
            L += [f"v_lshlrev_b32 v{XR+2*i}, 16, v{Q+i}", f"v_and_b32 v{XR+2*i+1}, 0xffff0000, v{Q+i}"]
        for i in range(20): L.append(f"v_mul_f32 v{XR+i}, v{XR+i}, v{GC}")
        seq(P("xq"), L, 2)
        L = [lambda: self.lgw("pr2")] + [f"v_mul_f32 v{U+i}, v{U+i}, v{GC+2}" for i in range(20)]
        c = seq(180 + o["pb3"] + 10, L, 2)
        yb = P("ybar"); assert yb >= c - 6
        def bar():
            a.wait_vm("y"); a("s_barrier"); self.stamp("ybar")
            for j in range(5): a.dsop(f"ds_read_b64_tr_b16 {v(YR+2*j,2)}, v{YT1 if j&1 else YT0} offset:{512*j}", tag=f"yr{j}")
        YL = []
        for i in range(10):
            t = 128 + 2 * (i & 3)
            if i & 1 == 0: YL.append(lambda i=i: self.lgw(f"yr{i>>1}"))
            YL += [f"v_lshlrev_b32 v{t}, 16, v{YR+i}", f"v_and_b32 v{t+1}, 0xffff0000, v{YR+i}"]
            YL.append((i, t))
        if yb < 240:
            at(3, yb - 180, bar)
            c = yb + 6
            while YL and c < 240:
                k = 0
                while YL and k < 2:
                    t = YL.pop(0)
                    if isinstance(t, tuple):
                        i, r = t; t = f"v_fma_f32 v{U+2*i}, v{XR+2*i}, v{r}, v{U+2*i}\nv_fma_f32 v{U+2*i+1}, v{XR+2*i+1}, v{r+1}, v{U+2*i+1}"; k += 1
                    if not callable(t): k += 1
                    at(3, c - 180, lambda t=t: self.e1(t))
                c += 1
        if self.prof:
            for s_ in (0, 1, 2): at(s_, 59, lambda s_=s_: self.stamp(f"g2s{s_}"))
        for st in range(4):
            for kk in range(12):
                a.wait_vm(f"h{st}_{kk}")
                for j in range(5):
                    c = v(DR(st, j), 4) if kk or st else "0"
                    a(f"v_mfma_f32_16x16x32_bf16 {v(DR(st,j),4)}, {ar((kk*5+j)*4,4)}, {v(HR(st,kk),4)}, {c}")
                    for f in side.pop((st, kk * 5 + j), []): f()
        assert not side, side.keys()
        self.stamp("g2s3")
        fin = lambda i: a(f"v_pk_fma_f32 {v(U+2*i,2)}, {v(DR(3,i>>1)+2*(i&1),2)}, {v(GC+2,2)}, {v(U+2*i,2)}")
        late = bool(YL)
        if late:
            if yb >= 240: bar()
            for i in range(10): fin(i)
        done = 10 - sum(isinstance(t, tuple) for t in YL)
        for i in range(10):
            if not late: fin(i)
            while i >= done:
                t = YL.pop(0)
                if isinstance(t, tuple):
                    a(f"v_pk_fma_f32 {v(U+2*i,2)}, {v(XR+2*i,2)}, {v(t[1],2)}, {v(U+2*i,2)}"); break
                self.e1(t)
            if i in (3, 7, 9):
                for i2 in range(i - (3 if i < 9 else 1), i + 1): a(f"v_cvt_pk_bf16_f32 v{Q+i2}, v{U+2*i2}, v{U+2*i2+1}")
                if i == 3: a.vmem(f"buffer_store_dwordx4 {v(Q,4)}, v{QO}, {R(SO)}, 0 offen")
                if i == 7: a.vmem(f"buffer_store_dwordx4 {v(Q+4,4)}, v{QO}, {R(SO)}, 0 offen offset:16")
        a.vmem(f"buffer_store_dwordx2 {v(Q+8,2)}, v{QO}, {R(SO)}, 0 offen offset:32")

    def build(self):
        a = self.a; o = self.o
        for k_ in ("pub3", "poll3", "chk3", "ybar", "xq"):
            if isinstance(o[k_], int): o[k_] = divmod(o[k_], 100)
        if self.prof: a("s_memrealtime s[100:101]"); self.stamp("pro")
        if o.get("pf"):
            a(f"s_cmp_ge_u32 s2, 256\ns_cbranch_scc1 {self.end}")
            a("s_getpc_b64 s[66:67]\nLpc0:")
            a("v_lshrrev_b32 v1, 3, v0\ns_bfe_u32 s68, s2, 0x30003\ns_lshl_b32 s68, s68, 5\nv_add_lshl_u32 v1, v1, s68, 7")
            a(f"v_min_u32 v1, {self.end}-Lpc0, v1")
            a.vmem("global_load_dword v254, v1, s[66:67]")
        self.prologue()
        self.tile("s2", "s70", "s71")
        nload = f"buffer_load_dword v{NV}, off, {R(SDBG)}, 0 sc1"
        nst = 0; first = True; ssm = True
        def ga():
            if not getattr(self, "gad", False): self.g1_addr(); self.gad = True
        for c in o["order"]:
            if c.isdigit():
                ga(); self.kwait()
                assert int(c) == nst; self.g1_dma(nst); nst += 1
            elif c == "k": self.kv_dma("s70", "s71", 0, SHR, True); a.mark("pld")
            elif c == "j": self.job2_dma(); a.mark("pld")
            elif c == "g": assert nst <= 1; self.gb_dma(); a.mark("pld")
            elif c in "ab": self.pf_w1(c == "b")
            elif c == "x": self.pf_x()
            elif c == "s": self.cv_addr(); self.emit(self.cv_h_loads()); ssm = False
            elif c == "P":
                self.stamp("iss")
                ga(); self.ones_init(); self.g1_addr2()
                self.phase_p(); a.vmem(nload, tag="nonce"); self.stamp("P")
            if first:
                first = False
                Ln = a.label("Lnp")
                a(f"s_cmp_lg_u32 s2, 0\ns_cbranch_scc1 {Ln}\ns_cmp_lg_u32 {WV}, 1\ns_cbranch_scc1 {Ln}")
                a("s_memrealtime s[66:67]\ns_waitcnt lgkmcnt(0)\ns_lshl_b32 s66, s66, 5\ns_or_b32 s66, s66, 16\nv_mov_b32 v1, s66\ns_mov_b64 exec, 1")
                a(f"buffer_store_dword v1, off, {R(SDBG)}, 0 sc1\ns_mov_b64 exec, -1\ns_nop 1")
                a(f"{Ln}:")
        dq = []
        for n in range(nst, o["PD"]): dq += self.g1_dma_list(n)
        side = []
        if ssm: side += self.cap(self.cv_addr)
        side += self.cap(self.g2_rot) + self.cap(lambda: self.g2_w2f_addr(WF)) + self.cap(self.pf_w2_addr) + self.cap(self.cv_addr2) + self.cap(self.h_addr)
        side += [o["qhs"]] + self.hs_write(1) + self.hs_write(2) + [lambda: a.wait_vm("cvh")] + self.cap(self.cv_special)
        side += [30] + self.hs_write(0) + [f"ds_write_b128 v{SPA}, {v(SPV,4)}", f"ds_write_b16 v{FXA}, v{FXV}"]
        p0load = f"buffer_load_dword v{PL0}, v{PLA+1}, {R(SWS)}, s72 offen sc1"
        p1load = f"buffer_load_dword v{PL1}, v{PLA}, {R(SWS)}, s72 offen sc1"
        W = [(e[0].replace("VR", f"v{WF}"),) + e[1:] for e in self.g2_w2f_list(0)]
        st = dict(pub=False, w=False, sq=[])
        def popw(k):
            if st["w"]: self.pop(W, k)
        def hook(q, pos):
            n = q >> 2
            if pos == "bar" and not st["pub"] and a.vm["nonce"] >= a.vm[f"st{n+1}"]:
                Lc, Lok = a.label("Lnc"), a.label("Lnok")
                a(f"s_movk_i32 s20, {SPIN}")
                a(f"{Lc}:\nv_readfirstlane_b32 {NONCE}, v{NV}\ns_cmp_lg_u32 {NONCE}, 0\ns_cbranch_scc1 {Lok}")
                a(f"s_sub_u32 s20, s20, 1\ns_cbranch_scc1 {Lok}\ns_sleep 1\n{nload}\ns_waitcnt vmcnt(0)\ns_branch {Lc}\n{Lok}:")
                a(f"s_or_b32 s88, s88, {NONCE}\nv_mov_b32 v{PUBV}, s88\ns_lshl_b32 s20, s2, {FS}\ns_add_u32 s20, s20, {FP}\ns_cmp_eq_u32 {WV}, 0\ns_cselect_b64 exec, 1, 0")
                a.vmem(f"buffer_store_dword v{PUBV}, off, {R(SWS)}, s20 sc1")
                a("s_mov_b64 exec, -1")
                st["pub"] = True; print(f"publish at q={q}", file=sys.stderr)
            if q == o["qssm"] and ssm:
                assert not any(isinstance(t, str) and f"s_mov_b32 s72, {FP}" in t for t in side)
                st["sq"] = self.cv_h_loads()
            self.pop(st["sq"], o["sqr"])
            if q == o["poll"]:
                assert st["pub"]
                a.vmem(p1load, tag="poll1"); a.vmem(p0load, tag="poll0")
            if q == o["chk1"]:
                assert q > 26 or (q == 26 and pos == "bar")
                self.stamp("c1a"); self.checkp("poll1", p1load, PL1); self.stamp("chk1")
                assert not self.dq
                for z in range(3):
                    a(f"s_lshl_b32 s20, {WV}, 10\ns_add_u32 m0, s20, {L_KV}" if z == 0 else f"s_add_u32 m0, m0, {KVP}")
                    a.vmem(f"buffer_load_dwordx4 v{TID}, {R(SWS)}, s{81+z} offen sc1 lds", tag="cvkv")
            if q == o["chk0"]:
                self.checkp("poll0", p0load, PL0); self.stamp("chk0")
                if o["pf2"]: self.pfl(PFA, SWS, 0, o["mwf"]); self.pfl(PFA, SWS, "s75", o["mwf"])
                a(f"v_cmp_ne_u32 s[22:23], s88, v{PL0}\ns_lshr_b32 {LOC}, s23, 16")
                if not o["loc"]: a(f"s_mov_b32 {LOC}, 1")
            if q == o["pfq"]:
                a.vmem(f"buffer_load_dword v234, v{QO}, {R(SQ)}, 0 offen offset:36")
                a.vmem(f"buffer_load_dword v234, v{B2A}, {R(SB2)}, 0 offen offset:36")
            if q == o["chk0"] + o["dw"]: st["w"] = True
            if not self.dq: popw(o["wq"])
        self.g1_loop(hook, dq, side)
        self.stamp("G1")
        p2load = f"buffer_load_dword v{P2V}, v{P2A}, {R(SWS)}, s45 offen sc1"
        def chook(c):
            if c % o["wc"] == 1: popw(1)
            if not st.get("p2") and (c == 184 or c - getattr(self, "gend", 999) >= o["dpub"]):
                st["p2"] = c
                Ln, Lj = a.label("Lnl"), a.label("Lnj")
                a.wait_vm("hst")
                a(f"s_mov_b64 exec, 1\ns_cmp_lg_u32 {LOC}, 0\ns_cbranch_scc1 {Ln}")
                a.vmem(f"buffer_store_dword v{NV}, off, {R(SWS)}, s44")
                a(f"{Lj}:\ns_mov_b64 exec, -1")
                self.tail = f"{Ln}:\nbuffer_wbl2 sc1\ns_waitcnt vmcnt(0)\nbuffer_store_dword v{NV}, off, {R(SWS)}, s44 sc1\ns_branch {Lj}"
                self.stamp("pub2")
            if st.get("p2") and "poll2" not in a.vm and (c == 184 or c >= o["dpoll"]): a.vmem(p2load, tag="poll2")
            if c == 184:
                assert not W
                for i in range(3): a.vmem(f"buffer_load_dwordx{4 if i < 2 else 2} {v(B2+4*i,4 if i < 2 else 2)}, v{B2A}, {R(SB2)}, 0 offen offset:{16*i}", tag="b2")
        self.gelu_conv(chook)
        self.stamp("fin")
        Hr = sum((self.g2_h_list(i) for i in range(4)), [])
        H0_ = []
        while sum(e[1] for e in H0_) < 24: H0_.append(Hr.pop(0))
        Ls, Lj = a.label("Lsl"), a.label("Lsj")
        a.wait_vm("poll2")
        a(f"v_cmp_ne_u32 vcc, {NONCE}, v{P2V}\ns_nop 1\ns_cbranch_vccnz {Ls}")
        s0 = a.snap()
        def slow():
            a(f"{Ls}:"); self.y_stores(); a("s_waitcnt vmcnt(0)"); self.stamp("yack"); self.one_lane_store(NV, "s46")
            a.vmem(p2load, tag="poll2"); self.check("poll2", p2load, [P2V])
            self.stamp("ok2"); self.emit(H0_)
            for i in range(3): a.vmem(p2load.replace(" sc1", ""))
            a(f"s_branch {Lj}")
        self.tail += "\n" + "\n".join(self.capture(slow))
        a.restore(s0)
        self.stamp("yack"); self.stamp("ok2"); self.emit(H0_); self.y_stores()
        a(f"{Lj}:"); self.stamp("chk2")
        self.g2_main(Hr)
        self.stamp("g2end")
        return self.finish()
    def epilogue(self):
        self.a(f"s_endpgm\n{self.tail}")
        super().epilogue()

if __name__ == "__main__":
    out = sys.argv[1]
    opt = {}; prof = False
    for x in sys.argv[2:]:
        if x == "prof": prof = True
        else:
            k_, v_ = x.split("=")
            try: opt[k_] = int(v_)
            except ValueError: opt[k_] = v_.replace("+", " ")
    g_ = J("f", prof, **opt)
    open(out, "w").write(g_.build())
    print("nops", g_.a.nops_added, "stamps", len(g_.names), file=sys.stderr)
```
